```python
import torch

def _softmax(x, axis=-1):
    return torch.softmax(x, dim=axis)

def _gelu(x):
    return torch.nn.functional.gelu(x, approximate='tanh')

def _silu(x):
    return torch.nn.functional.silu(x)

def _sigmoid(x):
    return torch.sigmoid(x)

def _layernorm(x, axis=-1, eps=1e-05):
    m = x.mean(dim=axis, keepdim=True)
    v = x.var(dim=axis, keepdim=True, unbiased=False)
    return (x - m) / torch.sqrt(v + eps)

def _scatter_add(tgt, idx, src, axis=0):
    return tgt.clone().index_add_(axis, idx, src)

def _segment_sum(src, seg, n):
    out = torch.zeros((n,) + src.shape[1:], dtype=src.dtype)
    return out.index_add_(0, seg, src)

def _pad(x, pw):
    flat = tuple((v for pair in reversed(pw) for v in pair))
    return torch.nn.functional.pad(x, flat)
kernel_name = 'adaLN_cond__linear_kernel_hedgehog__mixer_gmlp__prompt'

def setup_inputs():

    _w = lambda a: (lambda t: t.to(torch.bfloat16) if t.is_floating_point() else t)(torch.as_tensor(a))

    def _A_setup():
        B, S, D, H = (1, 2048, 640, 32)
        Dh = D // H
        return {'x': _w((lambda *s: torch.randn(*s, dtype=torch.bfloat16) * 0.05)(B, S, D)), 'wqkv': _w((lambda *s: torch.randn(*s, dtype=torch.bfloat16) * 0.4)(D, 3 * D)), 'w_phi': _w((lambda *s: torch.randn(*s, dtype=torch.bfloat16) * 0.4)(H, Dh, Dh) * Dh ** (-0.5)), 'wo': _w((lambda *s: torch.randn(*s, dtype=torch.bfloat16) * 0.05)(D, D))}
    _A_in = _A_setup()

    def _B_setup():
        B, S, D, F = (1, 2048, 640, 1536)
        Fh = F // 2
        return {'x': _w((lambda *s: torch.randn(*s, dtype=torch.bfloat16) * 0.05)(B, S, D)), 'w_in': _w((lambda *s: torch.randn(*s, dtype=torch.bfloat16) * 0.2)(D, 2 * Fh)), 'w_sp': _w(0.01 * (lambda *s: torch.randn(*s, dtype=torch.bfloat16) * 0.2)(S, S)), 'b_sp': _w(1.0 + 0.01 * (lambda *s: torch.randn(*s, dtype=torch.bfloat16) * 0.05)(S)), 'w_out': _w((lambda *s: torch.randn(*s, dtype=torch.bfloat16) * 0.05)(Fh, D))}
    _B_in = _B_setup()
    return {'A_x': _A_in['x'], 'A_wqkv': _A_in['wqkv'], 'A_w_phi': _A_in['w_phi'], 'A_wo': _A_in['wo'], 'B_x': _B_in['x'], 'B_w_in': _B_in['w_in'], 'B_w_sp': _B_in['w_sp'], 'B_b_sp': _B_in['b_sp'], 'B_w_out': _B_in['w_out'], 'c': _w((lambda *s: torch.randn(*s, dtype=torch.bfloat16) * 0.1)(1, 640) * 8.0), 'w_mod': _w((lambda *s: torch.randn(*s, dtype=torch.bfloat16) * 0.1)(640, 6 * 640) * 640 ** (-0.5) * 8.0)}

def reference(A_x, A_wqkv, A_w_phi, A_wo, B_x, B_w_in, B_w_sp, B_b_sp, B_w_out, c, w_mod):

    def _A_ref(x, wqkv, w_phi, wo):
        B, S, D = x.shape
        H = 32
        Dh = D // H
        qkv = (lambda x, *d: x.permute(*d))((x @ wqkv).reshape(B, S, 3, H, Dh), 2, 0, 3, 1, 4)
        q, k, v = (qkv[0], qkv[1], qkv[2])
        pq = torch.einsum('bhsd,hdf->bhsf', q, w_phi)
        pk = torch.einsum('bhsd,hdf->bhsf', k, w_phi)
        phi_q = torch.concatenate([_softmax(pq, axis=-1), _softmax(-pq, axis=-1)], axis=-1)
        phi_k = torch.concatenate([_softmax(pk, axis=-1), _softmax(-pk, axis=-1)], axis=-1)
        kv = torch.einsum('bhsf,bhsd->bhfd', phi_k, v)
        z = torch.einsum('bhsf->bhf', phi_k)
        num = torch.einsum('bhqf,bhfd->bhqd', phi_q, kv)
        den = torch.einsum('bhqf,bhf->bhq', phi_q, z)[..., None] + 1e-06
        o = num / den
        return (lambda x, *d: x.permute(*d))(o, 0, 2, 1, 3).reshape(B, S, D) @ wo

    def _B_ref(x, w_in, w_sp, b_sp, w_out):
        B, S, D = x.shape
        F = w_in.shape[-1]
        Fh = F // 2
        z = _gelu(torch.einsum('bsd,df->bsf', x, w_in))
        z1 = z[..., :Fh].clone()
        z2 = _layernorm(z[..., Fh:], axis=-1)
        g = torch.einsum('ts,bsf->btf', w_sp, z2) + b_sp[None, :, None]
        return torch.einsum('bsf,fd->bsd', z1 * g, w_out)
    x = A_x
    mod = (_silu(c) @ w_mod).reshape(c.shape[0], 6, 1, -1)
    sa, ca, ga, sb, cb, gb = (mod[:, 0].clone(), mod[:, 1].clone(), mod[:, 2].clone(), mod[:, 3].clone(), mod[:, 4].clone(), mod[:, 5].clone())
    h = _layernorm(x, axis=-1) * (1 + ca) + sa
    x = x + ga * _A_ref(h, A_wqkv, A_w_phi, A_wo)
    h = _layernorm(x, axis=-1) * (1 + cb) + sb
    x = x + gb * _B_ref(h, B_w_in, B_w_sp, B_b_sp, B_w_out)
    return x
```

```python
import re

def vr(base, n=1):
    return f"v{base}" if n == 1 else f"v[{base}:{base+n-1}]"
def ar(base, n=1):
    return f"a{base}" if n == 1 else f"a[{base}:{base+n-1}]"
def sr(base, n=1):
    return f"s{base}" if n == 1 else f"s[{base}:{base+n-1}]"

_REG = re.compile(r'^-?(?:abs\()?\|?([vas])(?:(\d+)|\[(\d+):(\d+)\])\|?\)?$')
def _regs(op):
    op = op.strip()
    m = _REG.match(op)
    if m:
        k = m.group(1)
        if m.group(2) is not None:
            return [(k, int(m.group(2)))]
        return [(k, i) for i in range(int(m.group(3)), int(m.group(4)) + 1)]
    if op in ('vcc', 'vcc_lo', 'vcc_hi'): return [('s', 'vcc')]
    if op in ('exec', 'exec_lo', 'exec_hi'): return [('s', 'exec')]
    if op == 'm0': return [('s', 'm0')]
    return []

TRANS = ('v_exp_f32', 'v_log_f32', 'v_rcp_f32', 'v_rsq_f32', 'v_sqrt_f32', 'v_sin_f32', 'v_cos_f32', 'v_rcp_iflag_f32')
class Ins:
    def __init__(self, text):
        self.text = text
        t = text.split(';')[0].strip()
        self.label = t.endswith(':')
        parts = t.split(None, 1)
        self.mn = parts[0] if parts else ''
        rest = parts[1] if len(parts) > 1 else ''
        ops = [o.strip() for o in rest.split(',')] if rest else []
        self.mods = ''
        cleaned = []
        depth = 0; cur = ''
        ops = []
        for ch in rest:
            if ch == '[': depth += 1
            if ch == ']': depth -= 1
            if ch == ',' and depth == 0:
                ops.append(cur.strip()); cur = ''
            else:
                cur += ch
        if cur.strip(): ops.append(cur.strip())
        if ops:
            sp = ops[-1].split(None, 1)
            ops[-1] = sp[0]
            self.mods = sp[1] if len(sp) > 1 else ''
        self.ops = ops
        mn = self.mn
        self.kind = 'other'
        self.w = []; self.r = []
        self.nop = 0
        R = lambda i: _regs(ops[i]) if i < len(ops) else []
        allr = lambda lo: [x for i in range(lo, len(ops)) for x in R(i)]
        if self.label or not mn or mn.startswith('.'):
            self.kind = 'meta'
        elif mn == 's_nop':
            self.kind = 'nop'; self.nop = int(ops[0], 0) + 1
        elif mn.startswith('v_mfma'):
            self.kind = 'mfma'; self.w = R(0); self.A = R(1); self.B = R(2); self.C = R(3); self.r = self.A + self.B + self.C
            self.passes = 8 if '32x32' in mn else 4
        elif mn.startswith('v_'):
            self.kind = 'valu'
            base = re.sub(r'_(e32|e64|dpp|sdwa)$', '', mn)
            self.base = base
            self.dpp = mn.endswith('_dpp') or 'row_' in self.mods or 'quad_perm' in self.mods
            if base.startswith('v_cmp'):
                self.w = R(0); self.r = allr(1)
            elif base in ('v_readfirstlane_b32', 'v_readlane_b32'):
                self.w = R(0); self.r = allr(1)
            elif base.startswith('v_permlane'):
                self.w = R(0) + R(1); self.r = R(0) + R(1)
            elif base in ('v_add_co_u32', 'v_sub_co_u32', 'v_addc_co_u32', 'v_subb_co_u32'):
                self.w = R(0) + R(1); self.r = allr(2)
            else:
                self.w = R(0); self.r = allr(1)
                if base in ('v_fmac_f32', 'v_dot2c_f32_bf16', 'v_writelane_b32') or self.dpp:
                    self.r = self.r + R(0)
            self.trans = base in TRANS
            self.dl = base.startswith('v_dot')
        elif mn.startswith('ds_'):
            self.kind = 'ds'
            if mn.startswith('ds_read') or mn.startswith('ds_bpermute') or mn.startswith('ds_swizzle'):
                self.w = R(0); self.r = allr(1)
            else:
                self.r = allr(0)
        elif mn.startswith('buffer_') or mn.startswith('global_'):
            self.kind = 'vmem'
            self.lds = ' lds' in (' ' + self.mods)
            self.store = '_store' in mn or ('_atomic' in mn)
            if mn.startswith('buffer_load') and not self.lds or mn.startswith('global_load') and not self.lds:
                self.w = R(0); self.r = allr(1)
                if 'd16' in mn: self.r = self.r + R(0)
            else:
                self.r = allr(0)
            if self.lds: self.r = self.r + [('s', 'm0')]
            self.wide = self.store and ('x3' in mn or 'x4' in mn)
            self.data = (R(0) if mn.startswith('buffer_') else R(1)) if self.store else []
        elif mn.startswith('s_'):
            self.kind = 'salu'
            if mn.startswith(('s_cmp', 's_cbranch', 's_branch', 's_waitcnt', 's_barrier', 's_endpgm', 's_sleep', 's_setprio', 's_bitcmp')):
                self.r = allr(0)
            else:
                self.w = R(0); self.r = allr(1)
                if 'saveexec' in mn: self.w = self.w + [('s', 'exec')]

def need(p, c):
    n = 0
    pw = set(p.w); cr = set(c.r); cw = set(c.w)
    vec = lambda s: {x for x in s if x[0] in 'va'}
    sc = lambda s: {x for x in s if x[0] == 's'}
    if p.kind == 'valu':
        raw_v = vec(pw) & vec(cr)
        if c.kind == 'mfma' and raw_v: n = max(n, 3 if p.dl else 2)
        if c.kind == 'valu':
            if raw_v and c.base.startswith('v_permlane'): n = max(n, 2)
            if raw_v and c.dpp: n = max(n, 2)
            if raw_v and c.base in ('v_readfirstlane_b32', 'v_readlane_b32'): n = max(n, 1)
            if raw_v and p.trans and not c.trans: n = max(n, 1)
            if raw_v and p.trans and c.trans: n = max(n, 1)
            if p.dl:
                if (vec(pw) & (vec(cr) | vec(cw))):
                    same_c = c.dl and c.base == p.base and not (vec(pw) & set(_regs(c.ops[1]) + _regs(c.ops[2])))
                    if not same_c: n = max(n, 3)
            s_raw = sc(pw) & sc(cr)
            if s_raw:
                n = max(n, 2)
                if c.base in ('v_readlane_b32', 'v_writelane_b32'): n = max(n, 4)
            if ('s', 'vcc') in pw and c.base == 'v_cndmask_b32' and len(c.ops) == 4 and c.ops[3] == 'vcc': n = max(n, 2)
            if ('s', 'exec') in pw: n = max(n, 5)
        if c.kind in ('vmem', 'ds'):
            if sc(pw) & sc(cr): n = max(n, 5)
            if p.dl and raw_v: n = max(n, 3)
        if c.kind == 'salu' and (sc(pw) & sc(cr)): n = max(n, 1)
    if p.kind == 'mfma':
        D = vec(pw)
        big = {4: 8, 8: 12}[p.passes]; ovl = {4: 6, 8: 10}[p.passes]; war = {4: 3, 8: 7}[p.passes]
        if c.kind == 'mfma':
            if D & set(c.A + c.B): n = max(n, big)
            if D & set(c.C):
                if not (p.w == c.C and p.passes == c.passes): n = max(n, ovl)
            elif D & vec(cw): n = max(n, big)
        elif c.kind == 'valu':
            if D & (vec(cr) | vec(cw)): n = max(n, big)
            if set(p.C) & vec(cw): n = max(n, war)
        elif c.kind in ('vmem', 'ds'):
            if D & (vec(cr) | vec(cw)): n = max(n, big)
            if set(p.C) & vec(cw): n = max(n, war)
    if p.kind == 'salu':
        if ('s', 'm0') in pw and ('s', 'm0') in cr and c.kind == 'vmem': n = max(n, 1)
    if p.kind == 'vmem' and getattr(p, 'wide', False):
        if set(p.data) & vec(cw): n = max(n, 2 if c.kind == 'valu' else 1)
    return n

def hazard_pass(lines):
    out = []
    added = 0
    for text in lines:
        c = Ins(text)
        if c.kind not in ('meta', 'nop'):
            dist = 0; short = 0
            for p in reversed(out):
                if p.kind == 'meta': continue
                if dist >= 20: break
                k = need(p, c)
                if k > dist: short = max(short, k - dist)
                dist += p.nop if p.kind == 'nop' else 1
            while short > 0:
                k = min(short, 16)
                out.append(Ins(f"s_nop {k-1}")); added += 1
                short -= k
        out.append(c)
    return [o.text for o in out], added

class Asm:
    def __init__(self):
        self.lines = []
        self._lab = 0
        self.nvm = 0
        self.nds = 0
        self.vm_done = 0
        self.ds_done = 0
    def __call__(self, s=""):
        for l in s.split("\n"):
            l = l.strip()
            if l:
                mn = l.split()[0]
                if mn.startswith(('buffer_', 'global_')): self.nvm += 1
                if mn.startswith('ds_'): self.nds += 1
                self.lines.append(l)
    def c(self, s):
        self.lines.append("; " + s)
    def label(self, name):
        self.lines.append(name + ":")
    def newlabel(self, base="L"):
        self._lab += 1
        return f"{base}_{self._lab}"
    def vmtok(self): return self.nvm
    def dstok(self): return self.nds
    def wait(self, vm=None, ds=None):
        parts = []
        if vm is not None and vm > self.vm_done:
            n = self.nvm - vm
            assert n <= 63, f"vmcnt {n} too large"
            parts.append(f"vmcnt({n})"); self.vm_done = vm
        if ds is not None and ds > self.ds_done:
            n = self.nds - ds
            assert n <= 15, f"lgkmcnt {n} too large"
            parts.append(f"lgkmcnt({n})"); self.ds_done = ds
        if parts: self.lines.append("s_waitcnt " + " ".join(parts))
    def wait_all(self, vm=True, ds=True):
        parts = []
        if vm: parts.append("vmcnt(0)"); self.vm_done = self.nvm
        if ds: parts.append("lgkmcnt(0)"); self.ds_done = self.nds
        self.lines.append("s_waitcnt " + " ".join(parts))
    def text(self, hazards=True):
        lines = self.lines
        if hazards:
            lines, self.nops_added = hazard_pass(lines)
        return "\n".join(("" if l.endswith(":") else "    ") + l for l in lines) + "\n"

class Regs:
    def __init__(self, n, reserved=()):
        self.n = n; self.used = {}; self.hi = 0
        for r in reserved: self.used[r] = 'reserved'
    def alloc(self, cnt=1, align=1, name='?', at=None, hi=None):
        if hi is None: hi = cnt > 10
        rng = [at] if at is not None else range(0, self.n - cnt + 1, align)
        if hi and at is None: rng = reversed(list(rng))
        for b in rng:
            if all((b + i) not in self.used for i in range(cnt)) and b + cnt <= self.n:
                for i in range(cnt): self.used[b + i] = name
                self.hi = max(self.hi, b + cnt)
                return b
        raise RuntimeError(f"out of registers for {name} x{cnt} (at={at}); used={len(self.used)}")
    def free(self, base, cnt=1):
        for i in range(cnt):
            assert (base + i) in self.used, f"double free {base+i}"
            del self.used[base + i]

def kernel_header(name):
    return f""".text
.globl {name}
.p2align 8
.type {name},@function
{name}:
"""
def kernel_desc(name, vgpr, sgpr=102, accum=None, wg_y=False):
    if accum is None:
        accum = min(256, (vgpr + 3) // 4 * 4)
    s = f""".section .rodata,"a"
.p2align 6
.amdhsa_kernel {name}
  .amdhsa_next_free_vgpr {vgpr}
  .amdhsa_next_free_sgpr {sgpr}
  .amdhsa_accum_offset {accum}
  .amdhsa_group_segment_fixed_size 0
  .amdhsa_kernarg_size 112
  .amdhsa_user_sgpr_count 2
  .amdhsa_user_sgpr_kernarg_segment_ptr 1
  .amdhsa_system_sgpr_workgroup_id_x 1
"""
    if wg_y:
        s += "  .amdhsa_system_sgpr_workgroup_id_y 1\n"
    s += ".end_amdhsa_kernel\n"
    return s
```

```python
import sys
from asmlib import *

KN = 'adaLN_cond__linear_kernel_hedgehog__mixer_gmlp__prompt_kernel'

EPOCH = 0
RDY = 0x1000
MODG = 0x2000
CNT = 0x12000
CNT5 = 0x16000
KV2 = 0x18000
STA = 0x28000
STB = 0x48000
KV1 = 0x100000
OBUF = 0x500000
H2B = 0x800000
Z2B = 0xB00000
UBUF = 0xE00000
DIAG = 0x1200000
DUMP = 0x1400000
WS_SIZE = 0x10000000
OOB = 0x40000000

L_WA = 0
L_XS = 61440
L_SA = 143360
L_C1 = 145920
L_WT = 148480
L_ZERO = 152320
L_KT = 153728
L_MRED = 160448
L_OWN = 161536
L_PK = 20480
L_V = 40960
L_RED = 122880
LDS_SIZE = 163840

S_X, S_W, S_WO, S_WIN, S_WSP, S_WOUT, S_WS, S_OUT, S_WMOD, S_C, S_PHI, S_BSP = [4 + 4 * i for i in range(12)]
S_KA = 52
RB, CG, WV, TAG, TMO = 80, 81, 82, 83, 84
S_L2E = 86
ST = 88
S_STAMP = 96
SPIN_LIMIT = 1 << 17

LOG2E = 0x3fb8aa3b


def srd(x):
    return sr(x, 4)


class Gen:
    def __init__(self, stop=None, stamps=False, dumps=(), mapping='B'):
        self.a = Asm()
        self.v = Regs(256, reserved=[0])
        self.stop = stop
        self.stamps = stamps
        self.dumps = dumps
        self.mapping = mapping
        self.stamp_names = []
        self.dump_info = {}
        self.dump_off = DUMP

    def stamp(self, name):
        if not self.stamps:
            return
        a = self.a
        i = len(self.stamp_names)
        self.stamp_names.append(name)
        a(f"s_memrealtime {sr(S_STAMP, 2)}")
        a.wait_all(vm=False)
        a(f"v_writelane_b32 v{self.vstamp}, s{S_STAMP}, {i}")

    def dump(self, name, base, n, agpr=False):
        if name not in self.dumps:
            return
        a = self.a
        t = self.v.alloc(2, name='dumpt')
        a("s_nop 15")
        a(f"s_lshl_b32 s{ST}, s2, 2\ns_add_u32 s{ST}, s{ST}, s{WV}\ns_mul_i32 s{ST}, s{ST}, {n * 256}")
        a(f"s_add_u32 s{ST}, s{ST}, {self.dump_off}")
        a(f"v_lshlrev_b32 v{t}, 2, v{self.lane}")
        for i in range(n):
            src = base + i
            if agpr:
                a(f"v_accvgpr_read_b32 v{t + 1}, a{base + i}")
                src = t + 1
            a(f"buffer_store_dword v{src}, v{t}, {srd(S_WS)}, s{ST} offen")
            if agpr:
                a.wait_all(ds=False)
            a(f"s_add_u32 s{ST}, s{ST}, 256")
        a.wait_all(ds=False)
        self.dump_info[name] = (self.dump_off, n)
        self.dump_off += 1024 * n * 256
        self.v.free(t, 2)

    def maybe_stop(self, name):
        if self.stop == name:
            self.a.wait_all()
            self.a("s_branch L_fin")
            self.stopped = True
            raise StopIteration

    def spin_tail(self, loop):
        a = self.a
        a(f"s_add_u32 s{TMO}, s{TMO}, 1\ns_cmp_lt_u32 s{TMO}, {SPIN_LIMIT}\ns_cbranch_scc1 {loop}\ns_branch L_end")

    def poll_counter(self, soff, target, vt):
        a = self.a
        L = a.newlabel('L_poll'); Ld = a.newlabel('L_pdone')
        a(f"s_mov_b32 s{TMO}, 0")
        a.label(L)
        a(f"buffer_load_dword v{vt}, off, {srd(S_WS)}, s{soff} sc1")
        a.wait_all(ds=False)
        a(f"v_readfirstlane_b32 s{ST}, v{vt}")
        a(f"s_cmp_ge_u32 s{ST}, {target}\ns_cbranch_scc1 {Ld}")
        self.spin_tail(L)
        a.label(Ld)

    def signal(self, soff, vone):
        a = self.a
        a("s_mov_b64 exec, 1")
        a(f"buffer_atomic_add v{vone}, off, {srd(S_WS)}, s{soff} sc1")
        a("s_mov_b64 exec, -1")

    def poll_poison(self, loads, regs, vt):
        a = self.a
        L = a.newlabel('L_pp'); Ld = a.newlabel('L_ppdone')
        a(f"s_mov_b32 s{TMO}, 0")
        a.label(L)
        for l in loads:
            a(l)
        a.wait_all(ds=False)
        regs = list(regs)
        if len(regs) == 2:
            a(f"v_max_u32 v{vt}, v{regs[0]}, v{regs[1]}"); rest = []
        else:
            a(f"v_max3_u32 v{vt}, v{regs[0]}, v{regs[1]}, v{regs[2]}"); rest = regs[3:]
        while len(rest) >= 2:
            a(f"v_max3_u32 v{vt}, v{vt}, v{rest[0]}, v{rest[1]}"); rest = rest[2:]
        if rest:
            a(f"v_max_u32 v{vt}, v{vt}, v{rest[0]}")
        a(f"v_cmp_eq_u32 vcc, -1, v{vt}")
        a(f"s_cmp_eq_u64 vcc, 0\ns_cbranch_scc1 {Ld}")
        self.spin_tail(L)
        a.label(Ld)

    def stream(self, jobs, ring, nslot, la=4, hooks=None, ringk='a'):
        a = self.a
        hooks = hooks or {}
        rr = ar if ringk == 'a' else vr
        toks = {}

        def issue(j):
            reads, _ = jobs[j]
            b = ring + 4 * (j % nslot)
            for off, n, text in reads:
                a(text.format(dst=rr(b + off, n)))
            toks[j] = a.dstok()
        n = len(jobs)
        for j in range(min(la, n)):
            issue(j)
        for j in range(n):
            if j in hooks:
                hooks[j]()
            if j + la < n:
                issue(j + la)
            a.wait(ds=toks[j])
            b = ring + 4 * (j % nslot)
            a(jobs[j][1].format(f=rr(b, 4)))

    def ldsoff(self, bases, addr):
        k = addr >> 16
        return bases[k], addr & 0xffff

    def seg160_addr(self, regs, stride, t):
        a = self.a
        for i in range(5):
            a(f"v_add_u32 v{t}, {64 * i}, v{self.lane}")
            a(f"v_mul_u32_u24 v{t + 1}, 6554, v{t}\nv_lshrrev_b32 v{t + 1}, 16, v{t + 1}")
            a(f"v_mul_u32_u24 v{regs + i}, {stride - 160}, v{t + 1}")
            a(f"v_lshl_add_u32 v{regs + i}, v{t}, 4, v{regs + i}")
            if 0 < i < 4:
                a(f"v_subrev_u32 v{regs + i}, {1024 * i}, v{regs + i}")

    def dma_slot(self, regs, srdr, soff, m0src):
        a = self.a
        reg, const = m0src
        a(f"s_add_u32 m0, {reg}, {const}")
        for i in range(4):
            a(f"buffer_load_dwordx4 v{regs + i}, {srd(srdr)}, s{soff} offen offset:{1024 * i} lds")
        a(f"s_add_u32 m0, {reg}, {const + 4096}")
        a(f"buffer_load_dwordx4 v{regs + 4}, {srd(srdr)}, s{soff} offen lds")

    def allred_g(self, x, t):
        a = self.a
        a(f"v_mov_b32 v{t}, v{x}\nv_permlane32_swap_b32 v{x}, v{t}\nv_add_f32 v{x}, v{x}, v{t}")
        a(f"v_mov_b32 v{t}, v{x}\nv_permlane16_swap_b32 v{x}, v{t}\nv_add_f32 v{x}, v{x}, v{t}")

    def softmax_pair(self, P, EP, EN, OUT, t):
        a = self.a
        mx, mn = t, t + 1
        a(f"v_max3_f32 v{mx}, v{P}, v{P + 1}, v{P + 2}\nv_min3_f32 v{mn}, v{P}, v{P + 1}, v{P + 2}")
        for i in range(3, 19, 2):
            a(f"v_max3_f32 v{mx}, v{mx}, v{P + i}, v{P + i + 1}\nv_min3_f32 v{mn}, v{mn}, v{P + i}, v{P + i + 1}")
        a(f"v_max_f32 v{mx}, v{mx}, v{P + 19}\nv_min_f32 v{mn}, v{mn}, v{P + 19}")
        a(f"v_mul_f32 v{mx}, 0x{LOG2E ^ 0x80000000:08x}, v{mx}\nv_mul_f32 v{mn}, 0x{LOG2E:08x}, v{mn}")
        for i in range(0, 20, 2):
            a(f"v_pk_fma_f32 {vr(EP + i, 2)}, {vr(P + i, 2)}, {sr(S_L2E, 2)}, {vr(t, 2)} op_sel:[0,0,0] op_sel_hi:[1,1,0]")
            a(f"v_pk_fma_f32 {vr(EN + i, 2)}, {vr(P + i, 2)}, {sr(S_L2E, 2)}, {vr(t, 2)} op_sel:[0,0,1] op_sel_hi:[1,1,1] neg_lo:[1,0,0] neg_hi:[1,0,0]")
        for i in range(20):
            a(f"v_exp_f32 v{EP + i}, v{EP + i}")
        for i in range(20):
            a(f"v_exp_f32 v{EN + i}, v{EN + i}")
        sp, sn = t + 2, t + 4
        a(f"v_pk_add_f32 {vr(sp, 2)}, {vr(EP, 2)}, {vr(EP + 2, 2)}\nv_pk_add_f32 {vr(sn, 2)}, {vr(EN, 2)}, {vr(EN + 2, 2)}")
        for i in range(4, 20, 2):
            a(f"v_pk_add_f32 {vr(sp, 2)}, {vr(sp, 2)}, {vr(EP + i, 2)}\nv_pk_add_f32 {vr(sn, 2)}, {vr(sn, 2)}, {vr(EN + i, 2)}")
        a(f"v_add_f32 v{sp}, v{sp}, v{sp + 1}\nv_add_f32 v{sn}, v{sn}, v{sn + 1}")
        a(f"v_rcp_f32 v{sp}, v{sp}\nv_rcp_f32 v{sn}, v{sn}")
        for i in range(0, 20, 2):
            a(f"v_pk_mul_f32 {vr(EP + i, 2)}, {vr(EP + i, 2)}, {vr(sp, 2)} op_sel_hi:[1,0]")
        for i in range(0, 20, 2):
            a(f"v_pk_mul_f32 {vr(EN + i, 2)}, {vr(EN + i, 2)}, {vr(sn, 2)} op_sel_hi:[1,0]")
        for i in range(10):
            a(f"v_cvt_pk_bf16_f32 v{OUT + i}, v{EP + 2 * i}, v{EP + 2 * i + 1}")
        for i in range(10):
            a(f"v_cvt_pk_bf16_f32 v{OUT + 10 + i}, v{EN + 2 * i}, v{EN + 2 * i + 1}")

    def phi_transform(self, ACC, KP, PA, wtb):
        a = self.a
        for i in range(10):
            a(f"v_cvt_pk_bf16_f32 v{KP + i}, v{ACC + 2 * i}, v{ACC + 2 * i + 1}")
        a(f"v_mov_b32 v{KP + 10}, 0\nv_mov_b32 v{KP + 11}, 0")
        jobs = []
        for s in range(3):
            for T in range(5):
                rd = [(0, 4, f"ds_read_b128 {{dst}}, v{wtb} offset:{T * 192 + 16 * s}")]
                c = vr(PA + 4 * T, 4) if s else "0"
                jobs.append((rd, f"v_mfma_f32_16x16x32_bf16 {vr(PA + 4 * T, 4)}, {{f}}, {vr(KP + 4 * s, 4)}, {c}"))
        self.stream(jobs, 0, 8, la=6)

    def gelu(self, Z, n, T0, T1):
        a = self.a
        import struct
        k0 = -2.0 * 1.4426950408889634 * 0.7978845608028654
        k1 = k0 * 0.044715
        b = lambda x: struct.unpack('<I', struct.pack('<f', x))[0]
        a(f"s_mov_b32 s{ST}, 0x{b(k1):08x}\ns_mov_b32 s{ST + 1}, 0x{b(k1):08x}")
        a(f"v_mov_b32 v{T1}, 0x{b(k0):08x}\nv_mov_b32 v{T1 + 1}, 1.0")
        for i in range(0, n, 2):
            a(f"v_pk_mul_f32 {vr(T0 + i, 2)}, {vr(Z + i, 2)}, {vr(Z + i, 2)}")
        for i in range(0, n, 2):
            a(f"v_pk_fma_f32 {vr(T0 + i, 2)}, {vr(T0 + i, 2)}, {sr(ST, 2)}, {vr(T1, 2)} op_sel_hi:[1,1,0]")
        for i in range(0, n, 2):
            a(f"v_pk_mul_f32 {vr(T0 + i, 2)}, {vr(T0 + i, 2)}, {vr(Z + i, 2)}")
        for i in range(n):
            a(f"v_exp_f32 v{T0 + i}, v{T0 + i}")
        for i in range(0, n, 2):
            a(f"v_pk_add_f32 {vr(T0 + i, 2)}, {vr(T0 + i, 2)}, {vr(T1, 2)} op_sel:[0,1] op_sel_hi:[1,1]")
        for i in range(n):
            a(f"v_rcp_f32 v{T0 + i}, v{T0 + i}")
        for i in range(0, n, 2):
            a(f"v_pk_mul_f32 {vr(Z + i, 2)}, {vr(Z + i, 2)}, {vr(T0 + i, 2)}")

    def mean_rstd(self, s1, s2, n, out_rstd, out_nb):
        a = self.a
        import struct
        b = lambda x: struct.unpack('<I', struct.pack('<f', x))[0]
        a(f"v_mul_f32 v{s1}, 0x{b(1.0 / n):08x}, v{s1}")
        a(f"v_mul_f32 v{s2}, 0x{b(1.0 / n):08x}, v{s2}")
        a(f"v_fma_f32 v{s2}, -v{s1}, v{s1}, v{s2}")
        a(f"v_max_f32 v{s2}, 0, v{s2}")
        a(f"v_add_f32 v{s2}, 0x{b(1e-5):08x}, v{s2}")
        a(f"v_rsq_f32 v{out_rstd}, v{s2}")
        a(f"v_mul_f32 v{out_nb}, -v{s1}, v{out_rstd}")

    def act_loads_640(self, base, F, voff16, voff8):
        a = self.a
        toks = []
        a(f"s_lshl_b32 s{ST}, s{RB}, 2\ns_add_u32 s{ST}, s{ST}, s{WV}\ns_mul_i32 s{ST}, s{ST}, 20480\ns_add_u32 s{ST}, s{ST}, {base}")
        for m in range(4):
            for h in range(2):
                for sp in range(2):
                    a(f"buffer_load_dwordx4 {vr(F + 20 * m + 8 * h + 4 * sp, 4)}, v{voff16}, {srd(S_WS)}, s{ST} offen offset:{1024 * sp} sc1")
                    toks.append(a.vmtok())
                a(f"buffer_load_dwordx2 {vr(F + 20 * m + 16 + 2 * h, 2)}, v{voff8}, {srd(S_WS)}, s{ST} offen offset:2048 sc1")
                if h == 1:
                    toks.append(a.vmtok())
                a(f"s_add_u32 s{ST}, s{ST}, 2560")
        return toks

    def act_store_80(self, base, P, voff16, voff8):
        a = self.a
        a(f"s_lshl_b32 s{ST}, s{RB}, 2\ns_add_u32 s{ST}, s{ST}, s{WV}\ns_lshl_b32 s{ST}, s{ST}, 3\ns_add_u32 s{ST}, s{ST}, s{CG}")
        a(f"s_mul_i32 s{ST}, s{ST}, 2560\ns_add_u32 s{ST}, s{ST}, {base}")
        a(f"buffer_store_dwordx4 {vr(P, 4)}, v{voff16}, {srd(S_WS)}, s{ST} offen sc1")
        a(f"buffer_store_dwordx4 {vr(P + 4, 4)}, v{voff16}, {srd(S_WS)}, s{ST} offen offset:1024 sc1")
        a(f"buffer_store_dwordx2 {vr(P + 8, 2)}, v{voff8}, {srd(S_WS)}, s{ST} offen offset:2048 sc1")

    def wsp_setup(self):
        a = self.a; v = self.v
        self.wspd = v.alloc(2, name='wspd'); self.wspr = v.alloc(4, name='wspr')
        t = v.alloc(3, name='t')
        L = self.lane
        for hb in range(2):
            a(f"v_lshrrev_b32 v{t}, 3, v{L}\nv_add_u32 v{t}, {8 * hb}, v{t}")
            a(f"v_lshrrev_b32 v{t + 1}, 1, v{t}\nv_xor_b32 v{t + 1}, v{t + 1}, v{L}\nv_and_b32 v{t + 1}, 7, v{t + 1}")
            a(f"v_lshlrev_b32 v{t}, 12, v{t}\nv_lshl_add_u32 v{self.wspd + hb}, v{t + 1}, 4, v{t}")
            if hb:
                a(f"v_subrev_u32 v{self.wspd + hb}, 1024, v{self.wspd + hb}")
        n, g = self.vn, self.vg
        a(f"v_lshrrev_b32 v{t}, 1, v{n}\nv_and_b32 v{t + 1}, 2, v{g}\nv_xor_b32 v{t}, v{t}, v{t + 1}")
        a(f"v_and_b32 v{t + 1}, 7, v{n}\nv_lshl_add_u32 v{t}, v{t + 1}, 3, v{t}\nv_lshlrev_b32 v{t}, 4, v{t}")
        a(f"v_lshrrev_b32 v{t + 1}, 3, v{n}\nv_lshl_add_u32 v{t}, v{t + 1}, 10, v{t}")
        a(f"v_and_b32 v{t + 1}, 1, v{g}\nv_lshl_add_u32 v{t}, v{t + 1}, 3, v{t}")
        for k, x in enumerate((0, 1, 4, 5)):
            a(f"v_xor_b32 v{self.wspr + k}, {16 * x}, v{t}")
        v.free(t, 3)
        self.wsp_next = 0
        self.wsp_base = None

    def wsp_rebase(self, base):
        a = self.a
        a(f"s_lshl_b32 s{ST + 6}, s{WV}, 13\ns_add_u32 s{ST + 6}, s{ST + 6}, {base}")
        if self.wsp_base is None:
            for k in range(4):
                a(f"v_add_u32 v{self.wspr + k}, s{ST + 6}, v{self.wspr + k}")
        elif base != self.wsp_base:
            for k in range(4):
                a(f"v_add_u32 v{self.wspr + k}, {(base - self.wsp_base) & 0xffffffff}, v{self.wspr + k}")
        self.wsp_base = base

    def wsp_issue(self):
        a = self.a
        r = self.wsp_next
        ttp, q = r >> 1, r & 1
        t = ST + 4
        a(f"s_add_u32 s{t}, s{WV}, {ttp}\ns_and_b32 s{t}, s{t}, 3\ns_lshl_b32 s{t}, s{t}, 4")
        a(f"s_lshl_b32 s{t + 1}, s{RB}, 6\ns_add_u32 s{t}, s{t}, s{t + 1}\ns_lshl_b32 s{t}, s{t}, 12")
        a(f"s_lshl_b32 s{t + 1}, s{WV}, 10\ns_add_u32 s{t}, s{t}, s{t + 1}")
        if q:
            a(f"s_add_u32 s{t}, s{t}, 512")
        a(f"s_lshl_b32 s{ST + 6}, s{WV}, 13\ns_add_u32 s{ST + 6}, s{ST + 6}, {self.wsp_base}")
        for sp in range(4):
            a(f"s_add_u32 m0, s{ST + 6}, {2048 * sp}")
            a(f"buffer_load_dwordx4 v{self.wspd}, {srd(S_WSP)}, s{t} offen lds")
            a(f"buffer_load_dwordx4 v{self.wspd + 1}, {srd(S_WSP)}, s{t} offen offset:1024 lds")
            a(f"s_add_u32 s{t}, s{t}, 128")
        self.wsp_tok = a.vmtok()

    def wsp_read(self):
        a = self.a
        r = self.wsp_next
        ttp, q = r >> 1, r & 1
        a.wait(vm=self.wsp_tok)
        for sp in range(4):
            for sl in range(2):
                s = 8 * q + 2 * sp + sl
                for pc in range(2):
                    a(f"ds_read_b64 {ar((ttp * 16 + s) * 4 + 2 * pc, 2)}, v{self.wspr + 2 * sl + pc} offset:{2048 * sp}")
            if sp == 1:
                a.wait_all(vm=False)
        a.wait_all(vm=False)
        self.wsp_next += 1

    def wsp_rounds(self, n):
        for _ in range(n):
            self.wsp_issue()
            self.wsp_read()

    def build(self):
        try:
            self.body()
        except StopIteration:
            pass
        a = self.a
        a.label("L_fin")
        if self.stamps:
            t = 1
            a("s_nop 15")
            a(f"s_lshl_b32 s{ST}, s2, 2\ns_add_u32 s{ST}, s{ST}, s{WV}\ns_lshl_b32 s{ST}, s{ST}, 8\ns_add_u32 s{ST}, s{ST}, {DIAG}")
            a(f"v_lshlrev_b32 v0, 2, v{self.lane}")
            a(f"buffer_store_dword v{self.vstamp}, v0, {srd(S_WS)}, s{ST} offen")
        a.label("L_end")
        a("s_endpgm")
        hdr = open('adaLN_cond__linear_kernel_hedgehog__mixer_gmlp__prompt.s.ref').read().split('\n')
        hdr = [l for l in hdr if l.startswith(';') and '@launch' not in l and 'Override' not in l and 'grid=ceil' not in l]
        s = "\n".join(hdr) + f"\n; @launch grid=(256,1,1) block=(256,1,1) lds={LDS_SIZE}\n"
        s += '.amdgcn_target "amdgcn-amd-amdhsa--gfx950"\n' + kernel_header(KN) + a.text() + kernel_desc(KN, 512, 102, 256)
        return s

    def body(self):
        a = self.a; v = self.v
        a("s_cmp_ge_u32 s2, 256\ns_cbranch_scc1 L_end")
        a(f"s_load_dwordx16 {sr(S_KA, 16)}, s[0:1], 0")
        a(f"s_load_dwordx8 {sr(S_KA + 16, 8)}, s[0:1], 64")
        a(f"s_load_dwordx4 {sr(S_KA + 24, 4)}, s[0:1], 96")
        self.lane = v.alloc(name='lane'); self.vn = v.alloc(name='n'); self.vg = v.alloc(name='g')
        L, N, G = self.lane, self.vn, self.vg
        if self.stamps:
            self.vstamp = v.alloc(name='stamp')
            a(f"v_mov_b32 v{self.vstamp}, 0")
        a(f"v_and_b32 v{L}, 63, v0\nv_lshrrev_b32 v{G}, 6, v0")
        a(f"v_and_b32 v{N}, 15, v0")
        a(f"v_readfirstlane_b32 s{WV}, v{G}")
        a(f"v_bfe_u32 v{G}, v0, 4, 2")
        a(f"s_and_b32 s{ST}, s2, 7\ns_lshr_b32 s{ST + 1}, s2, 3")
        if self.mapping == 'A':
            a(f"s_lshl_b32 s{RB}, s{ST}, 2\ns_lshr_b32 s{CG}, s{ST + 1}, 3\ns_add_u32 s{RB}, s{RB}, s{CG}\ns_and_b32 s{CG}, s{ST + 1}, 7")
        else:
            a(f"s_lshr_b32 s{RB}, s{ST}, 1\ns_lshl_b32 s{RB}, s{RB}, 3\ns_lshr_b32 s{CG}, s{ST + 1}, 2\ns_add_u32 s{RB}, s{RB}, s{CG}")
            a(f"s_and_b32 s{CG}, s{ST}, 1\ns_lshl_b32 s{CG}, s{CG}, 2\ns_and_b32 s{ST + 1}, s{ST + 1}, 3\ns_add_u32 s{CG}, s{CG}, s{ST + 1}")
        a(f"s_mov_b32 s{S_L2E}, 0x{LOG2E:08x}\ns_mov_b32 s{S_L2E + 1}, 0x{LOG2E:08x}")
        WM = v.alloc(40, align=4, name='wm'); CV = v.alloc(10, name='cv', hi=True); t = v.alloc(6, align=2, name='t')
        vep = v.alloc(name='ep', hi=True)
        a(f"s_cmp_ge_u32 s2, 60\ns_cselect_b32 s{ST + 2}, 1, 0\ns_mul_i32 s{ST + 3}, s{ST + 2}, 60\ns_sub_u32 s{ST + 3}, s2, s{ST + 3}")
        a(f"s_mul_i32 s{ST + 4}, s{ST + 2}, 320\ns_mul_i32 s{ST + 5}, s{WV}, 80\ns_add_u32 s{ST + 4}, s{ST + 4}, s{ST + 5}")
        a(f"v_lshrrev_b32 v{t}, 3, v{L}\nv_and_b32 v{t + 1}, 7, v{L}")
        a(f"v_mul_u32_u24 v{t + 2}, 7680, v{t}\nv_lshl_add_u32 v{t + 2}, v{t + 1}, 4, v{t + 2}")
        a(f"v_lshlrev_b32 v{t + 3}, 1, v{t}")
        a(f"s_mul_i32 s{ST + 5}, s{ST + 4}, 7680\ns_lshl_b32 s{ST + 6}, s{ST + 3}, 7\ns_add_u32 s{ST + 5}, s{ST + 5}, s{ST + 6}")
        a(f"s_lshl_b32 s{ST + 4}, s{ST + 4}, 1")
        a("s_waitcnt lgkmcnt(0)")
        sizes = {S_X: (0, 2048 * 1280), S_W: (1, 640 * 3840), S_PHI: (2, 32 * 800), S_WO: (3, 640 * 1280), S_WIN: (5, 640 * 3072),
                 S_WSP: (6, 2048 * 4096), S_BSP: (7, 4096), S_WOUT: (8, 768 * 1280), S_C: (9, 1280), S_WMOD: (10, 640 * 7680),
                 S_OUT: (11, 2048 * 1280), S_WS: (13, WS_SIZE)}

        def mk(x):
            i, n = sizes[x]
            a(f"s_mov_b32 s{x}, s{S_KA + 2 * i}\ns_and_b32 s{x + 1}, s{S_KA + 2 * i + 1}, 0xffff\ns_mov_b32 s{x + 2}, {n}\ns_mov_b32 s{x + 3}, 0x20000")
        for x in (S_WS, S_C, S_WMOD):
            mk(x)
        self.stamp('start')
        a(f"buffer_load_dword v{vep}, off, {srd(S_WS)}, 0 sc1")
        Lnp = a.newlabel('L_np')
        a(f"s_cmp_ge_u32 s2, 120\ns_cbranch_scc1 {Lnp}")
        for i in range(10):
            a(f"buffer_load_ushort v{CV + i}, v{t + 3}, {srd(S_C)}, s{ST + 4} offen offset:{16 * i}")
        tok_c = a.vmtok()
        for i in range(10):
            a(f"buffer_load_dwordx4 {vr(WM + 4 * i, 4)}, v{t + 2}, {srd(S_WMOD)}, s{ST + 5} offen")
            a(f"s_add_u32 s{ST + 5}, s{ST + 5}, {8 * 7680}")
        a.label(Lnp)
        KS, CB64 = S_KA + 26, S_KA + 27
        for x in (S_X, S_W, S_PHI, S_WO, S_WIN, S_WSP, S_BSP, S_WOUT, S_OUT):
            mk(x)
        a(f"s_mov_b32 s{KS}, s{ST + 2}\ns_mov_b32 s{CB64}, s{ST + 3}")
        PZ = v.alloc(4, align=4, name='poison', hi=True); vl16 = v.alloc(name='l16'); vl8 = v.alloc(name='l8')
        self.vl16, self.vl8 = vl16, vl8
        for i in range(4):
            a(f"v_mov_b32 v{PZ + i}, -1")
        a(f"v_lshlrev_b32 v{vl16}, 4, v{L}\nv_lshlrev_b32 v{vl8}, 3, v{L}")
        a(f"s_mul_i32 s{ST}, s{CG}, 30\ns_add_u32 s{ST}, s{ST}, s{RB}\ns_mul_i32 s{ST}, s{ST}, 14336\ns_mul_i32 s{ST + 1}, s{WV}, 3584")
        a(f"s_add_u32 s{ST}, s{ST}, s{ST + 1}\ns_add_u32 s{ST}, s{ST}, {KV1}")
        a(f"s_cmp_lt_u32 s{RB}, 30\ns_cselect_b32 s{ST + 1}, 0, {OOB}\nv_add_u32 v{t + 5}, s{ST + 1}, v{vl16}")
        a(f"v_cmp_gt_u32 vcc, 32, v{L}\nv_mov_b32 v{t + 4}, {OOB}\nv_cndmask_b32 v{t + 4}, v{t + 4}, v{t + 5}, vcc")
        for i in range(3):
            a(f"buffer_store_dwordx4 {vr(PZ, 4)}, v{t + 5}, {srd(S_WS)}, s{ST} offen offset:{1024 * i} sc1")
        a(f"buffer_store_dwordx4 {vr(PZ, 4)}, v{t + 4}, {srd(S_WS)}, s{ST} offen offset:3072 sc1")
        a(f"s_lshl_b32 s{ST}, s{RB}, 2\ns_add_u32 s{ST}, s{ST}, s{WV}\ns_lshl_b32 s{ST}, s{ST}, 3\ns_add_u32 s{ST}, s{ST}, s{CG}\ns_lshl_b32 s{ST}, s{ST}, 7")
        a(f"s_add_u32 s{ST + 1}, s{ST}, {STB - 128}\ns_add_u32 s{ST}, s{ST}, {STA}")
        a(f"s_lshl_b32 s{ST + 2}, s{CG}, 13\ns_mul_i32 s{ST + 3}, s{RB}, 224\ns_add_u32 s{ST + 2}, s{ST + 2}, s{ST + 3}\ns_add_u32 s{ST + 2}, s{ST + 2}, {KV2 - 256}")
        a(f"s_cmp_lt_u32 s{RB}, 30\ns_cselect_b32 s{ST + 2}, s{ST + 2}, {OOB}\ns_cmp_eq_u32 s{WV}, 0\ns_cselect_b32 s{ST + 2}, s{ST + 2}, {OOB}")
        a(f"v_mov_b32 v{t + 4}, {OOB}\nv_mov_b32 v{t + 5}, s{ST + 2}\nv_cmp_gt_u32 vcc, 30, v{L}\nv_cndmask_b32 v{t + 4}, v{t + 4}, v{t + 5}, vcc")
        a(f"v_mov_b32 v{t + 5}, s{ST + 1}\nv_cmp_gt_u32 vcc, 16, v{L}\nv_cndmask_b32 v{t + 4}, v{t + 4}, v{t + 5}, vcc")
        a(f"v_mov_b32 v{t + 5}, s{ST}\nv_cmp_gt_u32 vcc, 8, v{L}\nv_cndmask_b32 v{t + 4}, v{t + 4}, v{t + 5}, vcc")
        a(f"v_add_u32 v{t + 4}, v{t + 4}, v{vl16}")
        a(f"buffer_store_dwordx4 {vr(PZ, 4)}, v{t + 4}, {srd(S_WS)}, 0 offen sc1")
        a(f"s_lshl_b32 s{ST}, s{RB}, 2\ns_add_u32 s{ST}, s{ST}, s{WV}\ns_lshl_b32 s{ST}, s{ST}, 7\ns_add_u32 s{ST}, s{ST}, {CNT}")
        S_CNT = S_KA + 8
        S_CNT5W = S_KA + 9
        a(f"s_mov_b32 s{S_CNT}, s{ST}")
        a(f"s_cmp_eq_u32 s{CG}, 0\ns_cselect_b32 s{ST}, s{ST}, {OOB}")
        a(f"s_lshl_b32 s{ST + 1}, s{CG}, 2\ns_add_u32 s{ST + 2}, s{ST + 1}, s{WV}\ns_lshl_b32 s{ST + 2}, s{ST + 2}, 7\ns_add_u32 s{S_CNT5W}, s{ST + 2}, {CNT5}")
        a(f"s_add_u32 s{ST + 1}, s{ST + 1}, s{RB}\ns_lshl_b32 s{ST + 1}, s{ST + 1}, 7\ns_add_u32 s{ST + 1}, s{ST + 1}, {CNT5}")
        a(f"s_cmp_lt_u32 s{RB}, 4\ns_cselect_b32 s{ST + 1}, s{ST + 1}, {OOB}\ns_cmp_eq_u32 s{WV}, 0\ns_cselect_b32 s{ST + 1}, s{ST + 1}, {OOB}")
        a(f"v_mov_b32 v{t + 4}, {OOB}\nv_mov_b32 v{t + 5}, s{ST + 1}\nv_cmp_eq_u32 vcc, 1, v{L}\nv_cndmask_b32 v{t + 4}, v{t + 4}, v{t + 5}, vcc")
        a(f"v_mov_b32 v{t + 5}, s{ST}\nv_cmp_eq_u32 vcc, 0, v{L}\nv_cndmask_b32 v{t + 4}, v{t + 4}, v{t + 5}, vcc")
        a(f"v_mov_b32 v{t + 5}, 0")
        a(f"buffer_store_dword v{t + 5}, v{t + 4}, {srd(S_WS)}, 0 offen sc1")
        tok_clr = a.vmtok()
        XD = v.alloc(2, name='xd', hi=True)
        for hb in range(2):
            a(f"v_lshrrev_b32 v{t}, 3, v{L}\nv_add_u32 v{t}, {8 * hb}, v{t}")
            a(f"v_lshrrev_b32 v{t + 1}, 1, v{t}\nv_xor_b32 v{t + 1}, v{t + 1}, v{L}\nv_and_b32 v{t + 1}, 7, v{t + 1}")
            a(f"v_mul_u32_u24 v{t}, 1280, v{t}\nv_lshl_add_u32 v{XD + hb}, v{t + 1}, 4, v{t}")
            if hb:
                a(f"v_subrev_u32 v{XD + hb}, 1024, v{XD + hb}")
        S_XSB = S_KA + 0
        a(f"s_mul_i32 s{S_XSB}, s{WV}, 20480\ns_add_u32 s{S_XSB}, s{S_XSB}, {L_XS}")
        a(f"s_lshl_b32 s{ST}, s{RB}, 2\ns_add_u32 s{ST}, s{ST}, s{WV}\ns_mul_i32 s{ST}, s{ST}, 20480")
        for b in range(10):
            a(f"s_add_u32 m0, s{S_XSB}, {2048 * b}")
            a(f"buffer_load_dwordx4 v{XD}, {srd(S_X)}, s{ST} offen lds")
            a(f"buffer_load_dwordx4 v{XD + 1}, {srd(S_X)}, s{ST} offen offset:1024 lds")
            a(f"s_add_u32 s{ST}, s{ST}, 128")
        tok_x = a.vmtok()
        v.free(XD, 2)
        PH = v.alloc(4, name='phi_ld', at=60); self.vb = v.alloc(name='bsp')
        a(f"s_mul_i32 s{ST}, s{CG}, 3200")
        a(f"v_lshlrev_b32 v{t}, 2, v0")
        for i in range(3):
            a(f"buffer_load_dword v{PH + i}, v{t}, {srd(S_PHI)}, s{ST} offen offset:{1024 * i}")
        a(f"v_min_u32 v{t + 1}, 124, v{t}")
        a(f"buffer_load_dword v{PH + 3}, v{t + 1}, {srd(S_PHI)}, s{ST} offen offset:3072")
        a(f"s_lshl_b32 s{ST}, s{RB}, 2\ns_add_u32 s{ST}, s{ST}, s{WV}\ns_lshl_b32 s{ST}, s{ST}, 5\nv_lshlrev_b32 v{t}, 1, v{N}")
        a(f"buffer_load_ushort v{self.vb}, v{t}, {srd(S_BSP)}, s{ST} offen")
        tok_small = a.vmtok()
        WD = v.alloc(5, name='wd')
        self.seg160_addr(WD, 3840, t)
        S_WOFF = S_KA + 1
        S_WAB = S_KA + 2
        a(f"s_lshr_b32 s{ST}, s{WV}, 1\ns_mul_i32 s{ST}, s{ST}, {32 * 3840}\ns_and_b32 s{ST + 1}, s{WV}, 1\ns_add_u32 s{ST + 1}, s{ST + 1}, 1")
        a(f"s_mul_i32 s{ST + 1}, s{ST + 1}, 1280\ns_add_u32 s{ST}, s{ST}, s{ST + 1}\ns_mul_i32 s{ST + 1}, s{CG}, 160\ns_add_u32 s{S_WOFF}, s{ST}, s{ST + 1}")
        a(f"s_mul_i32 s{S_WAB}, s{WV}, 5120")

        def w_pair(m):
            if m < 3:
                m0 = (f"s{S_WAB}", L_WA + 20480 * m)
            elif m < 7:
                m0 = (f"s{S_XSB}", 5120 * (m - 3))
            else:
                m0 = (f"s{S_WAB}", L_WA + 20480 * (m - 7))
            self.dma_slot(WD, S_W, S_WOFF, m0)
            a(f"s_add_u32 s{S_WOFF}, s{S_WOFF}, {64 * 3840}")
        for m in range(3):
            w_pair(m)
        a(f"v_mov_b32 v{PZ}, 0\nv_mov_b32 v{PZ + 1}, 0\nv_mov_b32 v{PZ + 2}, 0\nv_mov_b32 v{PZ + 3}, 0")
        a(f"v_lshlrev_b32 v{t}, 4, v0\nv_add_u32 v{t}, {L_WT}, v{t}")
        a(f"ds_write_b128 v{t}, {vr(PZ, 4)}")
        a(f"v_min_u32 v{t}, {L_WT + 71 * 16}, v{t}")
        a(f"ds_write_b128 v{t}, {vr(PZ, 4)} offset:4096")
        a.wait(vm=tok_clr) if False else None
        Lnp2 = a.newlabel('L_np2')
        a(f"s_cmp_ge_u32 s2, 120\ns_cbranch_scc1 {Lnp2}")
        a(f"s_waitcnt vmcnt({a.nvm - tok_c})")
        for i in range(10):
            a(f"v_lshlrev_b32 v{CV + i}, 16, v{CV + i}")
        SP = v.alloc(10, name='silu', hi=True)
        for i in range(10):
            a(f"v_mul_f32 v{SP + i}, 0x{LOG2E ^ 0x80000000:08x}, v{CV + i}")
        for i in range(10):
            a(f"v_exp_f32 v{SP + i}, v{SP + i}")
        for i in range(10):
            a(f"v_add_f32 v{SP + i}, 1.0, v{SP + i}")
        for i in range(10):
            a(f"v_rcp_f32 v{SP + i}, v{SP + i}")
        for i in range(10):
            a(f"v_mul_f32 v{CV + i}, v{CV + i}, v{SP + i}")
        for m in range(5):
            a(f"v_cvt_pk_bf16_f32 v{SP + m}, v{CV + 2 * m}, v{CV + 2 * m + 1}")
        AC = CV
        a(f"s_mov_b32 s{ST}, 0x05040100\ns_mov_b32 s{ST + 1}, 0x07060302")
        for i in range(8):
            a(f"v_mov_b32 v{AC + i}, 0")
        for m in range(5):
            a(f"s_waitcnt vmcnt({a.nvm - (tok_c + 2 * m + 2)})")
            A_, B_ = WM + 8 * m, WM + 8 * m + 4
            for d in range(4):
                a(f"v_perm_b32 v{t + (d & 1) * 2}, v{B_ + d}, v{A_ + d}, s{ST}")
                a(f"v_perm_b32 v{t + (d & 1) * 2 + 1}, v{B_ + d}, v{A_ + d}, s{ST + 1}")
                a(f"v_dot2_f32_bf16 v{AC + 2 * d}, v{t + (d & 1) * 2}, v{SP + m}, v{AC + 2 * d}")
                a(f"v_dot2_f32_bf16 v{AC + 2 * d + 1}, v{t + (d & 1) * 2 + 1}, v{SP + m}, v{AC + 2 * d + 1}")
        for i in range(4):
            a(f"v_permlane32_swap_b32 v{AC + 2 * i}, v{AC + 2 * i + 1}")
        for i in range(4):
            a(f"v_add_f32 v{AC + 2 * i}, v{AC + 2 * i}, v{AC + 2 * i + 1}")
        for i in range(2):
            a(f"v_permlane16_swap_b32 v{AC + 4 * i}, v{AC + 4 * i + 2}")
        for i in range(2):
            a(f"v_add_f32 v{AC + 4 * i}, v{AC + 4 * i}, v{AC + 4 * i + 2}")
        a(f"v_and_b32 v{t}, 8, v{L}\nv_cmp_ne_u32 vcc, 0, v{t}")
        a(f"v_cndmask_b32 v{t + 1}, v{AC + 4}, v{AC}, vcc")
        a(f"v_cndmask_b32 v{t + 2}, v{AC}, v{AC + 4}, vcc")
        a(f"v_add_f32_dpp v{t + 2}, v{t + 1}, v{t + 2} row_ror:8 row_mask:0xf bank_mask:0xf")
        a(f"v_lshlrev_b32 v{t}, 2, v0\nv_add_u32 v{t}, {L_MRED}, v{t}")
        a(f"ds_write_b32 v{t}, v{t + 2}")
        a.label(Lnp2)
        v.free(SP, 10); v.free(WM, 40); v.free(PZ, 4)
        a.wait(vm=tok_clr)
        a(f"v_readfirstlane_b32 s{ST}, v{vep}")
        a(f"s_mul_i32 s{TAG}, s{ST}, 0x9E3779B1\ns_add_u32 s{TAG}, s{TAG}, 0x7F4A7C15")
        a.wait_all(vm=False)
        a("s_barrier")
        Lw0 = a.newlabel('L_nw0'); Lnp3 = a.newlabel('L_np3')
        a(f"s_cmp_lg_u32 s{WV}, 0\ns_cbranch_scc1 {Lw0}")
        a(f"v_mov_b32 v{t + 1}, s{TAG}")
        a(f"s_cmp_ge_u32 s2, 120\ns_cbranch_scc1 {Lnp3}")
        a(f"v_lshlrev_b32 v{t + 2}, 2, v{L}")
        for i in range(4):
            a(f"ds_read_b32 v{AC + i}, v{t + 2} offset:{L_MRED - 0 + 256 * i}" if L_MRED + 768 < 65536 else "")
        if L_MRED + 768 >= 65536:
            a(f"v_add_u32 v{t + 2}, {L_MRED}, v{t + 2}")
            for i in range(4):
                a(f"ds_read_b32 v{AC + i}, v{t + 2} offset:{256 * i}")
        a(f"v_and_b32 v{t + 3}, 7, v{L}\nv_lshlrev_b32 v{t + 3}, 3, v{t + 3}")
        a(f"v_bfe_u32 v{t + 4}, v{L}, 5, 1\nv_or_b32 v{t + 3}, v{t + 3}, v{t + 4}")
        a(f"v_bfe_u32 v{t + 4}, v{L}, 4, 1\nv_lshl_or_b32 v{t + 3}, v{t + 4}, 1, v{t + 3}")
        a(f"v_bfe_u32 v{t + 4}, v{L}, 3, 1\nv_lshl_or_b32 v{t + 3}, v{t + 4}, 2, v{t + 3}")
        a(f"v_lshlrev_b32 v{t + 3}, 4, v{t + 3}")
        a(f"s_lshl_b32 s{ST}, s{CB64}, 10\ns_lshl_b32 s{ST + 1}, s{KS}, 3\ns_add_u32 s{ST}, s{ST}, s{ST + 1}\ns_add_u32 s{ST}, s{ST}, {MODG}")
        a("s_waitcnt lgkmcnt(0)")
        a(f"v_add_f32 v{AC}, v{AC}, v{AC + 1}\nv_add_f32 v{AC + 2}, v{AC + 2}, v{AC + 3}\nv_add_f32 v{t}, v{AC}, v{AC + 2}")
        a(f"buffer_store_dwordx2 {vr(t, 2)}, v{t + 3}, {srd(S_WS)}, s{ST} offen sc1")
        a.label(Lnp3)
        a(f"v_mov_b32 v{t + 2}, s{TAG}\nv_mov_b32 v{t + 3}, s{TAG}")
        a(f"s_lshl_b32 s{ST}, s2, 3\ns_add_u32 s{ST}, s{ST}, {RDY}")
        a("s_mov_b64 exec, 1")
        a(f"buffer_store_dwordx2 {vr(t + 2, 2)}, off, {srd(S_WS)}, s{ST} sc1")
        a("s_mov_b64 exec, -1")
        a.label(Lw0)
        a.nvm -= 2; a.ds_done = a.nds
        self.w0_extra = 2
        v.free(CV, 10); v.free(vep)
        self.stamp('modpub')
        a.wait(vm=tok_small)
        for i in range(4):
            if i < 3:
                a(f"v_add_u32 v{t}, {256 * i}, v0")
            else:
                a(f"v_min_u32 v{t}, 31, v0\nv_add_u32 v{t}, 768, v{t}")
            a(f"v_mul_u32_u24 v{t + 1}, 6554, v{t}\nv_lshrrev_b32 v{t + 1}, 16, v{t + 1}")
            a(f"v_mul_u32_u24 v{t + 2}, 10, v{t + 1}\nv_sub_u32 v{t + 2}, v{t}, v{t + 2}")
            a(f"v_mul_u32_u24 v{t + 3}, 205, v{t + 1}\nv_lshrrev_b32 v{t + 3}, 12, v{t + 3}")
            a(f"v_mul_u32_u24 v{t + 4}, 20, v{t + 3}\nv_sub_u32 v{t + 1}, v{t + 1}, v{t + 4}")
            a(f"v_lshl_add_u32 v{t + 4}, v{t + 2}, 1, v{t + 4}")
            a(f"v_mul_u32_u24 v{t + 4}, 48, v{t + 4}\nv_lshl_add_u32 v{t + 4}, v{t + 1}, 1, v{t + 4}\nv_add_u32 v{t + 4}, {L_WT}, v{t + 4}")
            a(f"ds_write_b16 v{t + 4}, v{PH + i}\nds_write_b16_d16_hi v{t + 4}, v{PH + i} offset:48")
        v.free(PH, 4)
        a(f"v_lshlrev_b32 v{self.vb}, 16, v{self.vb}")
        X = v.alloc(160, align=4, name='X'); XR = v.alloc(10, align=2, name='XR'); xb = v.alloc(4, name='xb', hi=True)
        a(f"v_lshrrev_b32 v{t}, 1, v{N}\nv_lshrrev_b32 v{t + 1}, 1, v{G}\nv_xor_b32 v{t}, v{t}, v{t + 1}")
        a(f"v_and_b32 v{t + 1}, 7, v{N}\nv_lshl_add_u32 v{t}, v{t + 1}, 3, v{t}\nv_lshlrev_b32 v{t}, 4, v{t}")
        a(f"v_lshrrev_b32 v{t + 1}, 3, v{N}\nv_lshl_add_u32 v{t}, v{t + 1}, 10, v{t}")
        a(f"v_and_b32 v{t + 1}, 1, v{G}\nv_lshl_add_u32 v{t}, v{t + 1}, 3, v{t}\nv_add_u32 v{t}, s{S_XSB}, v{t}")
        for k in range(4):
            a(f"v_xor_b32 v{xb + k}, {32 * k}, v{t}")
        a.wait_all(vm=False)
        SA_ = v.alloc(4, name='sacc', hi=True)
        for i in range(4):
            a(f"v_mov_b32 v{SA_ + i}, 0")
        a(f"s_mov_b32 s{ST}, 0x3f803f80")
        toks = {}

        def xread(s):
            for pc in range(2):
                a(f"ds_read_b64 {vr(X + 8 * s + 4 * pc + 2, 2)}, v{xb + 2 * (s & 1) + pc} offset:{2048 * (s >> 1)}")
            toks[s] = a.dstok()
        for s in range(6):
            xread(s)
        for s in range(20):
            if s + 6 < 20:
                xread(s + 6)
            a.wait(ds=toks[s])
            for pc in range(2):
                b = X + 8 * s + 4 * pc
                a(f"v_dot2_f32_bf16 v{SA_}, v{b + 2}, s{ST}, v{SA_}\nv_dot2_f32_bf16 v{SA_ + 2}, v{b + 2}, v{b + 2}, v{SA_ + 2}")
                a(f"v_dot2_f32_bf16 v{SA_ + 1}, v{b + 3}, s{ST}, v{SA_ + 1}\nv_dot2_f32_bf16 v{SA_ + 3}, v{b + 3}, v{b + 3}, v{SA_ + 3}")
                a(f"v_lshlrev_b32 v{b}, 16, v{b + 2}\nv_and_b32 v{b + 1}, 0xffff0000, v{b + 2}")
                a(f"v_lshlrev_b32 v{b + 2}, 16, v{b + 3}\nv_and_b32 v{b + 3}, 0xffff0000, v{b + 3}")
        a(f"s_mul_i32 s{ST + 1}, s{CG}, 160")
        a(f"v_lshrrev_b32 v{t + 3}, 1, v{N}")
        a(f"v_and_b32 v{t + 4}, 7, v{N}\nv_lshlrev_b32 v{t + 4}, 7, v{t + 4}\nv_lshrrev_b32 v{t + 5}, 3, v{N}")
        a(f"v_lshl_add_u32 v{t + 4}, v{t + 5}, 10, v{t + 4}\nv_add_u32 v{t + 4}, s{S_XSB}, v{t + 4}")
        for T in range(5):
            a(f"v_lshlrev_b32 v{t}, 3, v{G}\nv_add_u32 v{t}, s{ST + 1}, v{t}")
            if T:
                a(f"v_add_u32 v{t}, {32 * T}, v{t}")
            a(f"v_bfe_u32 v{t + 1}, v{t}, 4, 3\nv_xor_b32 v{t + 1}, v{t + 1}, v{t + 3}")
            a(f"v_lshl_add_u32 v{t + 1}, v{t + 1}, 4, v{t + 4}")
            a(f"v_lshrrev_b32 v{t + 2}, 7, v{t}\nv_lshl_add_u32 v{t + 1}, v{t + 2}, 11, v{t + 1}")
            a(f"v_and_b32 v{t}, 8, v{t}\nv_add_u32 v{t + 1}, v{t + 1}, v{t}")
            a(f"ds_read_b64 {vr(XR + 2 * T, 2)}, v{t + 1}")
        v.free(xb, 4)
        a(f"v_add_f32 v{SA_}, v{SA_}, v{SA_ + 1}\nv_add_f32 v{SA_ + 2}, v{SA_ + 2}, v{SA_ + 3}")
        self.allred_g(SA_, t); self.allred_g(SA_ + 2, t)
        self.mean_rstd(SA_, SA_ + 2, 640, t, t + 1)
        a.wait_all(vm=False)
        for m in range(3, 7):
            w_pair(m)
        for i in range(0, 160, 2):
            a(f"v_pk_fma_f32 {vr(X + i, 2)}, {vr(X + i, 2)}, {vr(t, 2)}, {vr(t, 2)} op_sel:[0,0,1] op_sel_hi:[1,0,1]")
        v.free(SA_, 4)
        self.stamp('ln1')
        self.dump('xhat', X, 160)
        SW = v.alloc(28, align=4, name='sweep'); so = v.alloc(3, name='so', hi=True)
        a(f"v_lshlrev_b32 v{so}, 4, v0")
        a(f"s_mul_i32 s{ST + 1}, s{CG}, 80\ns_add_u32 s{ST + 1}, s{ST + 1}, 1280")

        def own_off(dst, src):
            a(f"v_mul_u32_u24 v{t}, 205, v{src}\nv_lshrrev_b32 v{t}, 14, v{t}")
            a(f"v_mul_u32_u24 v{t}, 560, v{t}\nv_add3_u32 v{t}, v{t}, v{src}, s{ST + 1}\nv_lshlrev_b32 v{dst}, 4, v{t}")
        own_off(so + 1, 0)
        a(f"v_add_u32 v{t + 1}, 256, v0")
        own_off(so + 2, t + 1)
        a(f"v_and_b32 v{t + 1}, 127, v0\nv_lshlrev_b32 v{t + 1}, 4, v{t + 1}\nv_add_u32 v{t + 1}, {(RDY - MODG) & 0xffffffff}, v{t + 1}")
        a(f"v_cmp_gt_u32 vcc, 64, v0\nv_cndmask_b32 v{so + 2}, v{t + 1}, v{so + 2}, vcc")
        a(f"v_add_u32 v{so + 2}, {MODG}, v{so + 2}")
        Ls = a.newlabel('L_sw'); Lsd = a.newlabel('L_swd')
        a(f"s_mov_b32 s{TMO}, 0")
        for i in range(5):
            a(f"s_mov_b32 s{ST + 2 + i}, {MODG + 4096 * i}")
        a.label(Ls)
        for i in range(5):
            a(f"buffer_load_dwordx4 {vr(SW + 4 * i, 4)}, v{so}, {srd(S_WS)}, s{ST + 2 + i} offen sc1")
        a(f"buffer_load_dwordx4 {vr(SW + 20, 4)}, v{so + 1}, {srd(S_WS)}, s{ST + 2} offen sc1")
        a(f"buffer_load_dwordx4 {vr(SW + 24, 4)}, v{so + 2}, {srd(S_WS)}, 0 offen sc1")
        a.wait_all(ds=False)
        a(f"v_min_u32 v{t}, v{SW + 1}, v{SW + 3}\nv_max_u32 v{t + 1}, v{SW + 1}, v{SW + 3}")
        for i in range(1, 7):
            a(f"v_min3_u32 v{t}, v{t}, v{SW + 4 * i + 1}, v{SW + 4 * i + 3}\nv_max3_u32 v{t + 1}, v{t + 1}, v{SW + 4 * i + 1}, v{SW + 4 * i + 3}")
        a(f"v_cmp_ne_u32 vcc, s{TAG}, v{t}\nv_cmp_ne_u32 {sr(ST, 2)}, s{TAG}, v{t + 1}")
        a(f"s_or_b64 vcc, vcc, {sr(ST, 2)}\ns_cmp_eq_u64 vcc, 0\ns_cbranch_scc1 {Lsd}")
        self.spin_tail(Ls)
        a.label(Lsd)
        for i in range(7):
            a(f"v_add_f32 v{SW + 4 * i}, v{SW + 4 * i}, v{SW + 4 * i + 2}")
        a(f"v_add_f32 v{t}, 1.0, v{SW + 8}\nv_cmp_le_u32 vcc, 128, v0\nv_cndmask_b32 v{SW + 8}, v{SW + 8}, v{t}, vcc")
        a(f"v_add_f32 v{SW + 12}, 1.0, v{SW + 12}\nv_add_f32 v{SW + 16}, 1.0, v{SW + 16}")
        a(f"v_subrev_u32 v{t + 1}, 160, v0\nv_add_f32 v{t}, 1.0, v{SW + 20}\nv_cmp_gt_u32 vcc, 80, v{t + 1}\nv_cndmask_b32 v{SW + 20}, v{SW + 20}, v{t}, vcc")
        a(f"v_lshlrev_b32 v{t}, 2, v0\nv_add_u32 v{t + 1}, {L_SA}, v{t}\nv_add_u32 v{t + 2}, {L_OWN}, v{t}")
        for i in range(5):
            a(f"ds_write_b32 v{t + 1}, v{SW + 4 * i} offset:{1024 * i}")
        a(f"ds_write_b32 v{t + 2}, v{SW + 20}")
        Lo = a.newlabel('L_own')
        a(f"s_cmp_lg_u32 s{WV}, 0\ns_cbranch_scc1 {Lo}")
        a(f"ds_write_b32 v{t + 2}, v{SW + 24} offset:1024")
        a(f"s_cmp_lg_u32 s2, 0\ns_cbranch_scc1 {Lo}")
        a(f"v_mov_b32 v{t}, s{TAG}\ns_mov_b64 exec, 1")
        a(f"buffer_store_dword v{t}, off, {srd(S_WS)}, 0 sc1")
        a("s_mov_b64 exec, -1")
        a.label(Lo)
        a.nvm -= 1; a.vm_done = a.nvm
        v.free(SW, 28); v.free(so, 3)
        a.wait_all(vm=False)
        a("s_barrier")
        self.stamp('S0')
        self.maybe_stop('S0')

        trb = v.alloc(3, name='trb'); cb = v.alloc(name='cb'); CS = v.alloc(16, align=4, name='cs')
        ACC = v.alloc(40, align=4, name='acc_kv')
        a(f"v_bfe_u32 v{t}, v{L}, 2, 2\nv_lshl_add_u32 v{t}, v{G}, 2, v{t}\nv_mul_u32_u24 v{t}, 160, v{t}")
        a(f"v_and_b32 v{t + 1}, 3, v{L}\nv_mul_u32_u24 v{t + 1}, 40, v{t + 1}\nv_add_u32 v{trb}, v{t}, v{t + 1}")
        a(f"v_add_u32 v{trb + 1}, 0x10000, v{trb}\nv_add_u32 v{trb + 2}, 0x20000, v{trb}")
        a(f"v_lshlrev_b32 v{cb}, 4, v{G}\nv_add_u32 v{cb}, {L_SA}, v{cb}")
        trbs = [trb, trb + 1, trb + 2]

        def kv_slot(s, p):
            m, wl = s >> 1, 2 * (s & 1) + p
            if m < 3:
                return L_WA + (4 * m + wl) * 5120
            if m < 7:
                return L_XS + wl * 20480 + (m - 3) * 5120
            return L_WA + (4 * (m - 7) + wl) * 5120

        def q_slot(s):
            if s < 16:
                return L_XS + (s & 3) * 20480 + (s >> 2) * 5120
            return L_WA + (s - 16) * 5120

        def trjob(slot, T, acc, s, first):
            rd = []
            for h in range(2):
                b, o = self.ldsoff(trbs, slot + 8 * T + 2560 * h)
                rd.append((2 * h, 2, f"ds_read_b64_tr_b16 {{dst}}, v{b} offset:{o}"))
            c = "0" if first else vr(acc, 4)
            return (rd, f"v_mfma_f32_16x16x32_bf16 {vr(acc, 4)}, {{f}}, {vr(X + 4 * s, 4)}, {c}")
        ctok = {}

        def cread(s):
            a(f"ds_read_b128 {vr(CS, 4)}, v{cb} offset:{2560 + 128 * s}\nds_read_b128 {vr(CS + 4, 4)}, v{cb} offset:{2560 + 128 * s + 64}")
            a(f"ds_read_b128 {vr(CS + 8, 4)}, v{cb} offset:{128 * s}\nds_read_b128 {vr(CS + 12, 4)}, v{cb} offset:{128 * s + 64}")
            ctok[s] = a.dstok()

        def modulate(s, part):
            b = X + 8 * s
            if part == 0:
                a.wait(ds=ctok[s])
                for i in range(0, 8, 2):
                    a(f"v_pk_fma_f32 {vr(b + i, 2)}, {vr(b + i, 2)}, {vr(CS + i, 2)}, {vr(CS + 8 + i, 2)}")
            else:
                for i in range(4):
                    a(f"v_cvt_pk_bf16_f32 v{X + 4 * s + i}, v{b + 2 * i}, v{b + 2 * i + 1}")
        cread(0); modulate(0, 0); modulate(0, 1)

        def kv_segment(s0, s1):
            jobs = []; hooks = {}
            for s in range(s0, s1):
                j0 = len(jobs)
                for p in range(2):
                    for T in range(5):
                        jobs.append(trjob(kv_slot(s, p), T, ACC + 20 * p + 4 * T, s, s == 0))
                if s + 1 < 20:
                    hooks[j0 + 1] = (lambda s=s: cread(s + 1))
                    hooks[j0 + 6] = (lambda s=s: modulate(s + 1, 0))
                    hooks[j0 + 8] = (lambda s=s: modulate(s + 1, 1))
            self.stream(jobs, 0, 8, la=4, hooks=hooks)
        kv_segment(0, 6)
        a("s_barrier")
        for m in range(7, 10):
            w_pair(m)
        kv_segment(6, 14)
        a.wait_all()
        a("s_barrier")
        S_QOFF = S_WOFF
        a(f"s_mul_i32 s{ST}, s{WV}, {32 * 3840}\ns_mul_i32 s{ST + 1}, s{CG}, 160\ns_add_u32 s{S_QOFF}, s{ST}, s{ST + 1}")
        for k in range(4):
            self.dma_slot(WD, S_W, S_QOFF, (f"s{S_XSB}", 5120 * k))
            a(f"s_add_u32 s{S_QOFF}, s{S_QOFF}, {128 * 3840}")
        kv_segment(14, 20)
        a("s_barrier")
        self.dma_slot(WD, S_W, S_QOFF, (f"s{S_WAB}", L_WA))
        v.free(WD, 5); v.free(CS, 16); v.free(cb)
        v.free(X + 80, 80)
        self.stamp('kvgemm')
        self.dump('h', X, 80)
        self.dump('kv', ACC, 40)
        self.maybe_stop('kvgemm')
        wtb = v.alloc(name='wtb')
        a(f"v_and_b32 v{t}, 3, v{L}\nv_mad_u32_u24 v{t}, v{G}, 20, v{t}\nv_mul_u32_u24 v{t}, 48, v{t}\nv_add_u32 v{t}, {L_WT}, v{t}")
        a(f"v_lshrrev_b32 v{t + 1}, 2, v{N}\nv_cmp_eq_u32 vcc, v{t + 1}, v{G}\nv_mov_b32 v{t + 1}, {L_ZERO}\nv_cndmask_b32 v{wtb}, v{t + 1}, v{t}, vcc")
        KP = v.alloc(12, align=4, name='kp'); PA = v.alloc(20, align=4, name='pa')
        EP = v.alloc(20, align=2, name='ep'); EN = v.alloc(20, align=2, name='en')
        self.phi_transform(ACC, KP, PA, wtb)
        self.dump('pk', PA, 20)
        PHK = ACC
        self.softmax_pair(PA, EP, EN, PHK, t)
        VP = KP
        for i in range(10):
            a(f"v_cvt_pk_bf16_f32 v{VP + i}, v{ACC + 20 + 2 * i}, v{ACC + 20 + 2 * i + 1}")
        a(f"v_mov_b32 v{VP + 10}, 0x3f80\nv_mov_b32 v{VP + 11}, 0")
        a(f"s_lshl_b32 s{ST}, s{WV}, 4\nv_lshl_add_u32 v{t}, v{G}, 6, v{N}\nv_add_u32 v{t}, s{ST}, v{t}")
        a(f"v_mul_u32_u24 v{t + 1}, 80, v{t}\nv_mul_u32_u24 v{t}, 48, v{t}")
        for i in range(5):
            a(f"ds_write_b128 v{t + 1}, {vr(PHK + 4 * i, 4)} offset:{L_PK + 16 * i}")
        for i in range(3):
            a(f"ds_write_b128 v{t}, {vr(VP + 4 * i, 4)} offset:{L_V + 16 * i}")
        KO = EN
        a(f"s_mul_i32 s{ST}, s{WV}, 210")
        for Tf in range(3):
            for Td in range(2):
                d = KO + 2 * Tf + Td
                a(f"v_mad_u32_u24 v{t}, v{G}, 21, v{N}\nv_add_u32 v{t}, s{ST}, v{t}\nv_add_u32 v{t}, {84 * Tf + 16 * Td}, v{t}")
                a(f"v_mul_u32_u24 v{t + 1}, 2341, v{t}\nv_lshrrev_b32 v{t + 1}, 16, v{t + 1}\nv_mul_u32_u24 v{t + 1}, 13888, v{t + 1}")
                a(f"v_lshl_add_u32 v{d}, v{t}, 4, v{t + 1}")
                a(f"v_mov_b32 v{t}, {OOB}")
                if Tf == 2:
                    a(f"v_cmp_gt_u32 vcc, 2, v{G}\nv_cndmask_b32 v{d}, v{t}, v{d}, vcc")
                if Td == 1:
                    a(f"v_cmp_gt_u32 vcc, 5, v{N}\nv_cndmask_b32 v{d}, v{t}, v{d}, vcc")
        a(f"v_bfe_u32 v{t}, v{L}, 2, 2\nv_lshl_add_u32 v{t}, v{G}, 2, v{t}\ns_lshl_b32 s{ST}, s{WV}, 6\nv_add_u32 v{t}, s{ST}, v{t}")
        a(f"v_and_b32 v{t + 1}, 3, v{L}\nv_lshlrev_b32 v{t + 1}, 3, v{t + 1}")
        a(f"v_mad_u32_u24 v{t + 2}, v{t}, 48, v{t + 1}\nv_mul_u32_u24 v{t}, 80, v{t}\nv_add_u32 v{t}, v{t}, v{t + 1}")
        a.wait_all()
        a("s_barrier")
        KVA = ACC
        FA = EP
        for s2 in range(2):
            for Tf in range(3):
                for h in range(2):
                    a(f"ds_read_b64_tr_b16 {vr(FA + 4 * Tf + 2 * h, 2)}, v{t} offset:{L_PK + (32 * s2 + 16 * h) * 80 + 32 * Tf}")
            for Td in range(2):
                for h in range(2):
                    a(f"ds_read_b64_tr_b16 {vr(FA + 12 + 4 * Td + 2 * h, 2)}, v{t + 2} offset:{L_V + (32 * s2 + 16 * h) * 48 + 32 * Td}")
            a.wait_all(vm=False)
            for Tf in range(3):
                for Td in range(2):
                    d = vr(KVA + 4 * (2 * Tf + Td), 4)
                    a(f"v_mfma_f32_16x16x32_bf16 {d}, {vr(FA + 4 * Tf, 4)}, {vr(FA + 12 + 4 * Td, 4)}, {d if s2 else '0'}")
            if s2 == 0:
                a("s_nop 7")
        a(f"s_mul_i32 s{ST}, s{CG}, {30 * 14336}\ns_mul_i32 s{ST + 1}, s{RB}, 448\ns_add_u32 s{ST}, s{ST}, s{ST + 1}\ns_add_u32 s{ST}, s{ST}, {KV1}")
        for k in range(6):
            a(f"buffer_store_dwordx4 {vr(KVA + 4 * k, 4)}, v{KO + k}, {srd(S_WS)}, s{ST} offen sc1")
        self.stamp('kvpub')
        self.maybe_stop('kvpub')
        QA = ACC + 24 - 4
        a.wait_all(ds=False) if False else None
        QA = PA
        jobs = []
        for s in range(20):
            for T in range(5):
                jobs.append(trjob(q_slot(s), T, QA + 4 * T, s, s == 0))
        self.stream(jobs, 0, 8, la=5)
        v.free(trb, 3); v.free(X, 80)
        a("s_barrier")
        self.stamp('qgemm')
        self.dump('q', QA, 20)
        Lr = a.newlabel('L_nored')
        R1 = v.alloc(16, align=4, name='r1')
        a(f"s_cmp_ge_u32 s{RB}, 30\ns_cbranch_scc1 {Lr}")
        a(f"v_lshrrev_b32 v{t}, 3, v{L}\nv_min_u32 v{t}, 6, v{t}\ns_mul_i32 s{ST + 2}, s{WV}, 7\nv_add_u32 v{t}, s{ST + 2}, v{t}")
        a(f"v_and_b32 v{t + 1}, 7, v{L}\nv_mul_u32_u24 v{t + 2}, 1792, v{t + 1}\nv_lshl_add_u32 v{t + 2}, v{t}, 4, v{t + 2}")
        a(f"s_mul_i32 s{ST + 2}, s{CG}, 30\ns_add_u32 s{ST + 2}, s{ST + 2}, s{RB}\ns_mul_i32 s{ST + 2}, s{ST + 2}, 14336\ns_add_u32 s{ST + 2}, s{ST + 2}, {KV1}")
        self.poll_poison([f"buffer_load_dwordx4 {vr(R1 + 4 * i, 4)}, v{t + 2}, {srd(S_WS)}, s{ST + 2} offen offset:{448 * i} sc1" for i in range(4)],
                         range(R1, R1 + 16), t + 3)
        for i in range(0, 4, 2):
            a(f"v_pk_add_f32 {vr(R1 + i, 2)}, {vr(R1 + i, 2)}, {vr(R1 + 4 + i, 2)}\nv_pk_add_f32 {vr(R1 + 8 + i, 2)}, {vr(R1 + 8 + i, 2)}, {vr(R1 + 12 + i, 2)}")
        for i in range(0, 4, 2):
            a(f"v_pk_add_f32 {vr(R1 + i, 2)}, {vr(R1 + i, 2)}, {vr(R1 + 8 + i, 2)}")
        for ctl in ("quad_perm:[1,0,3,2]", "quad_perm:[2,3,0,1]", "row_half_mirror"):
            for i in range(4):
                a(f"v_add_f32_dpp v{R1 + i}, v{R1 + i}, v{R1 + i} {ctl} row_mask:0xf bank_mask:0xf")
        a(f"v_cvt_pk_bf16_f32 v{R1 + 4}, v{R1}, v{R1 + 1}\nv_cvt_pk_bf16_f32 v{R1 + 5}, v{R1 + 2}, v{R1 + 3}")
        a(f"v_lshlrev_b32 v{t}, 3, v{t}\nv_mov_b32 v{t + 2}, {OOB}\nv_cmp_eq_u32 vcc, 0, v{t + 1}\nv_cndmask_b32 v{t}, v{t + 2}, v{t}, vcc")
        a(f"v_cmp_gt_u32 vcc, 56, v{L}\nv_cndmask_b32 v{t}, v{t + 2}, v{t}, vcc")
        a(f"s_lshl_b32 s{ST}, s{CG}, 13\ns_mul_i32 s{ST + 1}, s{RB}, 224\ns_add_u32 s{ST}, s{ST}, s{ST + 1}\ns_add_u32 s{ST}, s{ST}, {KV2}")
        a(f"buffer_store_dwordx2 {vr(R1 + 4, 2)}, v{t}, {srd(S_WS)}, s{ST} offen sc1")
        a.label(Lr)
        a.vm_done = 0
        self.stamp('red1')
        OD = v.alloc(5, name='od')
        self.seg160_addr(OD, 1280, t)
        a(f"s_mul_i32 s{ST + 2}, s{WV}, {160 * 1280}\ns_mul_i32 s{ST + 1}, s{CG}, 160\ns_add_u32 s{ST + 2}, s{ST + 2}, s{ST + 1}")
        a(f"s_mul_i32 s{ST + 3}, s{WV}, 25600")
        for k in range(5):
            self.dma_slot(OD, S_WO, ST + 2, (f"s{ST + 3}", 5120 * k))
            a(f"s_add_u32 s{ST + 2}, s{ST + 2}, {32 * 1280}")
        PQ = ACC + 20
        PB = ACC
        self.phi_transform(QA, KP, PB, wtb)
        self.dump('pq', PB, 20)
        self.softmax_pair(PB, EP, EN, PQ, t)
        v.free(wtb)
        self.stamp('phiq')
        GA = EN
        for i in range(4):
            if i < 3:
                a(f"v_add_u32 v{t}, {256 * i}, v0")
            else:
                a(f"v_min_u32 v{t}, 71, v0\nv_add_u32 v{t}, 768, v{t}")
                a(f"v_lshlrev_b32 v{GA + 5}, 3, v{t}")
            a(f"v_mul_u32_u24 v{t + 1}, 19973, v{t}\nv_lshrrev_b32 v{t + 1}, 22, v{t + 1}")
            a(f"v_mul_u32_u24 v{t + 2}, 210, v{t + 1}\nv_sub_u32 v{t}, v{t}, v{t + 2}")
            a(f"v_mul_u32_u24 v{t + 2}, 3121, v{t}\nv_lshrrev_b32 v{t + 2}, 16, v{t + 2}")
            a(f"v_mul_u32_u24 v{t + 3}, 21, v{t + 2}\nv_sub_u32 v{t}, v{t}, v{t + 3}")
            a(f"v_mad_u32_u24 v{t}, v{t + 1}, 21, v{t}\nv_mul_u32_u24 v{t}, 80, v{t}")
            a(f"v_lshl_add_u32 v{t}, v{t + 2}, 3, v{t}\nv_add_u32 v{GA + i}, {L_KT}, v{t}")
        a(f"v_lshlrev_b32 v{GA + 4}, 3, v0")
        a(f"s_lshl_b32 s{ST + 2}, s{CG}, 13\ns_add_u32 s{ST + 2}, s{ST + 2}, {KV2}\ns_add_u32 s{ST + 3}, s{ST + 2}, 4096")
        lds_ = [f"buffer_load_dwordx2 {vr(R1, 2)}, v{GA + 4}, {srd(S_WS)}, s{ST + 2} offen sc1",
                f"buffer_load_dwordx2 {vr(R1 + 2, 2)}, v{GA + 4}, {srd(S_WS)}, s{ST + 2} offen offset:2048 sc1",
                f"buffer_load_dwordx2 {vr(R1 + 4, 2)}, v{GA + 4}, {srd(S_WS)}, s{ST + 3} offen sc1",
                f"buffer_load_dwordx2 {vr(R1 + 6, 2)}, v{GA + 5}, {srd(S_WS)}, s{ST + 2} offen sc1"]
        self.poll_poison(lds_, range(R1, R1 + 8), t)
        for i in range(4):
            a(f"ds_write_b64 v{GA + i}, {vr(R1 + 2 * i, 2)}")
        ktb = t + 2
        a(f"v_and_b32 v{t}, 3, v{L}\nv_mad_u32_u24 v{t + 1}, v{G}, 21, v{t}\nv_mul_u32_u24 v{t + 1}, 80, v{t + 1}\nv_add_u32 v{t + 1}, {L_KT}, v{t + 1}")
        a(f"v_lshrrev_b32 v{t + 3}, 2, v{N}\nv_cmp_eq_u32 vcc, v{t + 3}, v{G}\nv_mov_b32 v{t + 4}, {L_ZERO}\nv_cndmask_b32 v{ktb}, v{t + 4}, v{t + 1}, vcc")
        a(f"v_add_u32 v{t + 1}, 1600, v{t + 1}\nv_lshlrev_b32 v{t + 3}, 2, v{G}\nv_cmp_eq_u32 vcc, v{t + 3}, v{N}\nv_cndmask_b32 v{ktb + 1}, v{t + 4}, v{t + 1}, vcc")
        a.wait_all(vm=False)
        a("s_barrier")
        self.stamp('S1')
        v.free(R1, 16)
        OA = v.alloc(24, align=4, name='oa')
        jobs = []
        for s in range(5):
            for T in (5, 0, 1, 2, 3, 4):
                if T < 5:
                    rd = [(0, 4, f"ds_read_b128 {{dst}}, v{ktb} offset:{320 * T + 16 * s}")]
                else:
                    rd = [(0, 4, f"ds_read_b128 {{dst}}, v{ktb + 1} offset:{16 * s}")]
                d = vr(OA + 4 * T, 4)
                jobs.append((rd, f"v_mfma_f32_16x16x32_bf16 {d}, {{f}}, {vr(PQ + 4 * s, 4)}, {d if s else '0'}"))
        self.stream(jobs, 0, 8, la=6)
        a(f"v_add_f32 v{t}, 0x358637bd, v{OA + 20}\nv_rcp_f32 v{t}, v{t}")
        for i in range(0, 20, 2):
            a(f"v_pk_mul_f32 {vr(OA + i, 2)}, {vr(OA + i, 2)}, {vr(t, 2)} op_sel_hi:[1,0]")
        OP = KP
        for i in range(10):
            a(f"v_cvt_pk_bf16_f32 v{OP + i}, v{OA + 2 * i}, v{OA + 2 * i + 1}")
        self.act_store_80(OBUF, OP, vl16, vl8)
        vone = v.alloc(name='one')
        a(f"v_mov_b32 v{vone}, 1")
        a.wait_all(ds=False)
        self.signal(S_CNT, vone)
        self.stamp('opub')
        v.free(OA, 24); v.free(ACC, 40); v.free(PA, 20); v.free(EP, 20); v.free(EN, 20); v.free(KP, 12)
        self.maybe_stop('opub')

        self.wsp_setup(); self.wsp_rebase(102400)
        self.wsp_rounds(3)
        RING = v.alloc(32, align=4, name='ring')
        F = v.alloc(80, align=4, name='F'); X1 = v.alloc(20, align=4, name='x1', hi=False)
        tb = v.alloc(2, name='tb')
        a(f"v_bfe_u32 v{t}, v{L}, 2, 2\nv_mad_u32_u24 v{t}, v{G}, 20, v{t}\nv_mul_u32_u24 v{t}, 160, v{t}")
        a(f"v_and_b32 v{t + 1}, 3, v{L}\nv_lshl_add_u32 v{tb}, v{t + 1}, 3, v{t}\nv_add_u32 v{tb + 1}, 0x10000, v{tb}")
        self.poll_counter(S_CNT, 8, t)
        self.stamp('S2')
        ftok = self.act_loads_640(OBUF, F, vl16, vl8)

        def rows_o(ks):
            m, k = divmod(ks, 5)
            if k < 4:
                r0 = 80 * (2 * m + (k >> 1)) + 8 * (k & 1)
                return r0, r0 + 4
            return 160 * m + 16, 160 * m + 96

        def gemm640(rows, nT, addr, acc, transposed=True, la=5):
            jobs = []; hooks = {}
            for ks in range(20):
                hooks[len(jobs)] = (lambda ks=ks: a.wait(vm=ftok[ks]))
                for T in range(nT):
                    rd = []
                    for h in range(2):
                        b, o = addr(rows(ks)[h], T)
                        rd.append((2 * h, 2, f"ds_read_b64_tr_b16 {{dst}}, v{b} offset:{o}"))
                    d = vr(acc + 4 * T, 4); act = vr(F + 4 * ks, 4)
                    ops = f"{{f}}, {act}" if transposed else f"{act}, {{f}}"
                    jobs.append((rd, f"v_mfma_f32_16x16x32_bf16 {d}, {ops}, {d if ks else '0'}"))
            self.stream(jobs, RING, 8, la=la, hooks=hooks, ringk='v')
        gemm640(rows_o, 5, lambda r, T: self.ldsoff([tb, tb + 1], r * 160 + 32 * T), X1)
        a("s_barrier")
        self.stamp('P2')
        ob = v.alloc(name='ob'); M = v.alloc(40, align=4, name='M')
        a(f"v_lshlrev_b32 v{ob}, 4, v{G}\nv_add_u32 v{ob}, {L_OWN}, v{ob}")
        for T in range(5):
            a(f"ds_read_b128 {vr(M + 4 * T, 4)}, v{ob} offset:{64 * T}")
        for T in range(5):
            b = M + 20 + 4 * T
            a(f"v_lshlrev_b32 v{b}, 16, v{XR + 2 * T}\nv_and_b32 v{b + 1}, 0xffff0000, v{XR + 2 * T}")
            a(f"v_lshlrev_b32 v{b + 2}, 16, v{XR + 2 * T + 1}\nv_and_b32 v{b + 3}, 0xffff0000, v{XR + 2 * T + 1}")
        a.wait_all(vm=False)
        for i in range(0, 20, 2):
            a(f"v_pk_fma_f32 {vr(X1 + i, 2)}, {vr(X1 + i, 2)}, {vr(M + i, 2)}, {vr(M + 20 + i, 2)}")
        v.free(XR, 10)
        for T in range(5):
            a(f"ds_read_b128 {vr(M + 4 * T, 4)}, v{ob} offset:{640 + 64 * T}")
        for T in range(5):
            a(f"ds_read_b128 {vr(M + 20 + 4 * T, 4)}, v{ob} offset:{320 + 64 * T}")
        a(f"v_pk_add_f32 {vr(t, 2)}, {vr(X1, 2)}, {vr(X1 + 2, 2)}\nv_pk_mul_f32 {vr(t + 2, 2)}, {vr(X1, 2)}, {vr(X1, 2)}")
        a(f"v_pk_fma_f32 {vr(t + 2, 2)}, {vr(X1 + 2, 2)}, {vr(X1 + 2, 2)}, {vr(t + 2, 2)}")
        for i in range(4, 20, 2):
            a(f"v_pk_add_f32 {vr(t, 2)}, {vr(t, 2)}, {vr(X1 + i, 2)}\nv_pk_fma_f32 {vr(t + 2, 2)}, {vr(X1 + i, 2)}, {vr(X1 + i, 2)}, {vr(t + 2, 2)}")
        a(f"v_add_f32 v{t}, v{t}, v{t + 1}\nv_add_f32 v{t + 1}, v{t + 2}, v{t + 3}")
        a(f"v_permlane32_swap_b32 v{t}, v{t + 1}\nv_add_f32 v{t}, v{t}, v{t + 1}")
        a(f"v_mov_b32 v{t + 1}, v{t}\nv_permlane16_swap_b32 v{t}, v{t + 1}\nv_add_f32 v{t}, v{t}, v{t + 1}")
        a(f"v_lshlrev_b32 v{t + 1}, 2, v{N}\nv_lshl_add_u32 v{t + 2}, v{G}, 5, v{t + 1}\nv_mov_b32 v{t + 3}, {OOB}")
        a(f"v_and_b32 v{t + 4}, 1, v{G}\nv_cmp_eq_u32 vcc, 0, v{t + 4}\nv_cndmask_b32 v{t + 2}, v{t + 3}, v{t + 2}, vcc")
        S_STO = S_KA + 3
        a(f"s_lshl_b32 s{S_STO}, s{RB}, 2\ns_add_u32 s{S_STO}, s{S_STO}, s{WV}\ns_lshl_b32 s{S_STO}, s{S_STO}, 10")
        a(f"s_lshl_b32 s{ST}, s{CG}, 7\ns_add_u32 s{ST}, s{ST}, s{S_STO}\ns_add_u32 s{ST}, s{ST}, {STA}")
        a(f"buffer_store_dword v{t}, v{t + 2}, {srd(S_WS)}, s{ST} offen sc1")
        ID = v.alloc(3, name='id')
        for i in range(3):
            a(f"v_add_u32 v{t + 2}, {64 * i}, v{L}\nv_mul_u32_u24 v{t + 3}, 5462, v{t + 2}\nv_lshrrev_b32 v{t + 3}, 16, v{t + 3}")
            a(f"v_mul_u32_u24 v{t + 4}, 12, v{t + 3}\nv_sub_u32 v{t + 2}, v{t + 2}, v{t + 4}")
            a(f"v_bfe_u32 v{t + 4}, v{t + 3}, 2, 1\nv_lshlrev_b32 v{t + 4}, 1, v{t + 4}\nv_sub_u32 v{t + 2}, v{t + 2}, v{t + 4}")
            a(f"v_add_u32 v{t + 4}, 12, v{t + 2}\nv_min_u32 v{t + 2}, v{t + 2}, v{t + 4}")
            a(f"v_mul_u32_u24 v{t + 3}, 3072, v{t + 3}\nv_lshl_add_u32 v{ID + i}, v{t + 2}, 4, v{t + 3}")
            if i:
                a(f"v_subrev_u32 v{ID + i}, {1024 * i}, v{ID + i}")

        def win_dma(half):
            a(f"s_mul_i32 s{ST + 2}, s{WV}, {160 * 3072}\ns_mul_i32 s{ST + 3}, s{CG}, 192\ns_add_u32 s{ST + 2}, s{ST + 2}, s{ST + 3}")
            if half:
                a(f"s_add_u32 s{ST + 2}, s{ST + 2}, 1536")
            a(f"s_mul_i32 s{ST + 3}, s{WV}, 30720")
            for b in range(10):
                a(f"s_add_u32 m0, s{ST + 3}, {3072 * b}")
                for i in range(3):
                    a(f"buffer_load_dwordx4 v{ID + i}, {srd(S_WIN)}, s{ST + 2} offen offset:{1024 * i} lds")
                a(f"s_add_u32 s{ST + 2}, s{ST + 2}, {16 * 3072}")
        win_dma(1)
        a(f"v_lshl_add_u32 v{t + 1}, v{G}, 8, v{t + 1}\ns_add_u32 s{ST + 2}, s{S_STO}, {STA}")
        self.poll_poison([f"buffer_load_dword v{RING + i}, v{t + 1}, {srd(S_WS)}, s{ST + 2} offen offset:{64 * i} sc1" for i in range(4)],
                         range(RING, RING + 4), t)
        a(f"v_add_f32 v{RING}, v{RING}, v{RING + 2}\nv_add_f32 v{RING + 1}, v{RING + 1}, v{RING + 3}")
        self.allred_g(RING, t); self.allred_g(RING + 1, t + 1)
        self.mean_rstd(RING, RING + 1, 640, t, t + 1)
        self.stamp('S3a')
        HT = F
        a.wait_all(vm=False)
        for i in range(0, 20, 2):
            a(f"v_pk_fma_f32 {vr(HT + i, 2)}, {vr(X1 + i, 2)}, {vr(t, 2)}, {vr(t, 2)} op_sel:[0,0,1] op_sel_hi:[1,0,1]")
        for i in range(0, 20, 2):
            a(f"v_pk_fma_f32 {vr(HT + i, 2)}, {vr(HT + i, 2)}, {vr(M + i, 2)}, {vr(M + 20 + i, 2)}")
        for i in range(10):
            a(f"v_cvt_pk_bf16_f32 v{HT + 20 + i}, v{HT + 2 * i}, v{HT + 2 * i + 1}")
        self.act_store_80(H2B, HT + 20, vl16, vl8)
        a.wait_all(ds=False)
        self.signal(S_CNT, vone)
        v.free(M, 40)
        self.stamp('h2pub')
        self.dump('x1', X1, 20)
        self.maybe_stop('h2pub')

        a("s_barrier")
        self.wsp_rebase(122880)
        self.wsp_rounds(2)
        tb5 = v.alloc(2, name='tb5')
        a(f"v_bfe_u32 v{t}, v{L}, 2, 2\nv_lshl_add_u32 v{t}, v{G}, 2, v{t}\nv_mul_u32_u24 v{t}, 192, v{t}")
        a(f"v_and_b32 v{t + 1}, 3, v{L}\nv_lshl_add_u32 v{t}, v{t + 1}, 3, v{t}\nv_and_b32 v{t + 1}, 1, v{G}")
        a(f"v_lshl_add_u32 v{tb}, v{t + 1}, 5, v{t}\nv_add_u32 v{tb + 1}, 0x10000, v{tb}")
        a(f"v_xor_b32 v{t + 1}, 1, v{t + 1}\nv_mad_u32_u24 v{tb5}, v{t + 1}, 160, v{t}".replace("v_mad_u32_u24 v%d, v%d, 160, v%d" % (tb5, t + 1, t),
          "v_mul_u32_u24 v%d, 160, v%d\nv_add_u32 v%d, v%d, v%d" % (t + 1, t + 1, tb5, t + 1, t)))
        a(f"v_add_u32 v{tb5 + 1}, 0x10000, v{tb5}")
        self.poll_counter(S_CNT, 16, t)
        self.stamp('S3')
        ftok = self.act_loads_640(H2B, F, vl16, vl8)

        def rows_h(ks):
            m, k = divmod(ks, 5)
            if k < 4:
                r0 = 80 * (2 * m + (k >> 1)) + 32 * (k & 1)
                return r0, r0 + 16
            return 160 * m + 64, 160 * m + 144

        def win_addr(r, T):
            if T < 5:
                return self.ldsoff([tb, tb + 1], r * 192 + 32 * T)
            return self.ldsoff([tb5, tb5 + 1], r * 192)
        Z = v.alloc(24, align=4, name='z', hi=False); ZT = v.alloc(24, align=4, name='zt')
        gemm640(rows_h, 6, win_addr, Z, transposed=False)
        a("s_barrier")
        self.stamp('P3a')
        win_dma(0)
        self.gelu(Z, 24, ZT, t)
        SS = RING
        for i in range(0, 4, 2):
            a(f"v_pk_add_f32 {vr(SS + i, 2)}, {vr(Z + i, 2)}, {vr(Z + 4 + i, 2)}\nv_pk_mul_f32 {vr(SS + 4 + i, 2)}, {vr(Z + i, 2)}, {vr(Z + i, 2)}")
        for T in range(1, 6):
            for i in range(0, 4, 2):
                if T > 1:
                    a(f"v_pk_add_f32 {vr(SS + i, 2)}, {vr(SS + i, 2)}, {vr(Z + 4 * T + i, 2)}")
                a(f"v_pk_fma_f32 {vr(SS + 4 + i, 2)}, {vr(Z + 4 * T + i, 2)}, {vr(Z + 4 * T + i, 2)}, {vr(SS + 4 + i, 2)}")
        for ctl in ("quad_perm:[1,0,3,2]", "quad_perm:[2,3,0,1]", "row_half_mirror", "row_mirror"):
            for i in range(8):
                a(f"v_add_f32_dpp v{SS + i}, v{SS + i}, v{SS + i} {ctl} row_mask:0xf bank_mask:0xf")
        a(f"v_lshlrev_b32 v{t}, 4, v{G}\nv_mov_b32 v{t + 1}, {OOB}\nv_cmp_eq_u32 vcc, 0, v{N}\nv_cndmask_b32 v{t + 1}, v{t + 1}, v{t}, vcc")
        a(f"s_lshl_b32 s{ST}, s{CG}, 7\ns_add_u32 s{ST}, s{ST}, s{S_STO}\ns_add_u32 s{ST}, s{ST}, {STB}")
        a(f"buffer_store_dwordx4 {vr(SS, 4)}, v{t + 1}, {srd(S_WS)}, s{ST} offen sc1")
        a(f"buffer_store_dwordx4 {vr(SS + 4, 4)}, v{t + 1}, {srd(S_WS)}, s{ST} offen offset:64 sc1")
        self.stamp('gelu2')
        self.wsp_rounds(1)
        a(f"v_and_b32 v{t + 1}, 7, v{N}\nv_lshl_add_u32 v{t}, v{t + 1}, 7, v{t}\nv_lshrrev_b32 v{t + 1}, 3, v{N}\nv_lshl_add_u32 v{t}, v{t + 1}, 6, v{t}")
        a(f"s_add_u32 s{ST + 2}, s{S_STO}, {STB}")
        Q4 = RING + 8
        self.poll_poison([f"buffer_load_dwordx4 {vr(Q4, 4)}, v{t}, {srd(S_WS)}, s{ST + 2} offen sc1"], range(Q4, Q4 + 4), t + 1)
        for ctl in ("quad_perm:[1,0,3,2]", "quad_perm:[2,3,0,1]", "row_half_mirror"):
            for i in range(4):
                a(f"v_add_f32_dpp v{Q4 + i}, v{Q4 + i}, v{Q4 + i} {ctl} row_mask:0xf bank_mask:0xf")
        for i in range(4):
            a(f"v_mov_b32_dpp v{Q4 + 4 + i}, v{Q4 + i} row_ror:8 row_mask:0xf bank_mask:0xf")
        a(f"v_cmp_gt_u32 vcc, 8, v{N}")
        for i in range(4):
            a(f"v_cndmask_b32 v{SS + i}, v{Q4 + 4 + i}, v{Q4 + i}, vcc\nv_cndmask_b32 v{SS + 4 + i}, v{Q4 + i}, v{Q4 + 4 + i}, vcc")
        RS, NB = Q4, Q4 + 4
        for i in range(4):
            self.mean_rstd(SS + i, SS + 4 + i, 768, RS + i, NB + i)
        self.stamp('S4')
        for T in range(6):
            for i in range(0, 4, 2):
                a(f"v_pk_fma_f32 {vr(Z + 4 * T + i, 2)}, {vr(Z + 4 * T + i, 2)}, {vr(RS + i, 2)}, {vr(NB + i, 2)}")
        for T in range(6):
            a(f"v_cvt_pk_bf16_f32 v{ZT + 2 * T}, v{Z + 4 * T}, v{Z + 4 * T + 1}\nv_cvt_pk_bf16_f32 v{ZT + 2 * T + 1}, v{Z + 4 * T + 2}, v{Z + 4 * T + 3}")
        for p in range(3):
            a(f"v_permlane32_swap_b32 v{ZT + 4 * p}, v{ZT + 4 * p + 2}\nv_permlane32_swap_b32 v{ZT + 4 * p + 1}, v{ZT + 4 * p + 3}")
        a(f"v_and_b32 v{t}, 31, v{L}\nv_lshlrev_b32 v{t}, 4, v{t}\nv_lshrrev_b32 v{t + 1}, 5, v{L}\nv_lshl_add_u32 v{t}, v{t + 1}, 10, v{t}")
        a(f"s_lshl_b32 s{ST}, s{CG}, 6\ns_lshl_b32 s{ST + 1}, s{RB}, 1\ns_add_u32 s{ST}, s{ST}, s{ST + 1}\ns_lshr_b32 s{ST + 1}, s{WV}, 1\ns_add_u32 s{ST}, s{ST}, s{ST + 1}")
        a(f"s_mul_i32 s{ST}, s{ST}, 6144\ns_and_b32 s{ST + 1}, s{WV}, 1\ns_lshl_b32 s{ST + 1}, s{ST + 1}, 9\ns_add_u32 s{ST}, s{ST}, s{ST + 1}\ns_add_u32 s{ST}, s{ST}, {Z2B}")
        a(f"s_add_u32 s{ST + 1}, s{ST}, 4096")
        a(f"buffer_store_dwordx4 {vr(ZT, 4)}, v{t}, {srd(S_WS)}, s{ST} offen sc1")
        a(f"buffer_store_dwordx4 {vr(ZT + 4, 4)}, v{t}, {srd(S_WS)}, s{ST} offen offset:2048 sc1")
        a(f"buffer_store_dwordx4 {vr(ZT + 8, 4)}, v{t}, {srd(S_WS)}, s{ST + 1} offen sc1")
        a(f"s_lshl_b32 s{ST + 2}, s{CG}, 2\ns_lshr_b32 s{ST + 3}, s{RB}, 3\ns_add_u32 s{ST + 2}, s{ST + 2}, s{ST + 3}\ns_lshl_b32 s{ST + 2}, s{ST + 2}, 7\ns_add_u32 s{ST + 2}, s{ST + 2}, {CNT5}")
        a.wait_all(ds=False)
        self.signal(ST + 2, vone)
        self.stamp('z2pub')
        self.maybe_stop('z2pub')
        a("s_barrier")
        gemm640(rows_h, 6, win_addr, Z, transposed=True)
        self.gelu(Z, 24, ZT, t)
        v.free(ZT, 24); v.free(F, 80); v.free(RING, 32); v.free(tb5, 2); v.free(ID, 3)
        self.stamp('P3b')
        self.dump('z1', Z, 24)
        self.wsp_rounds(2)
        v.free(self.wspd, 2); v.free(self.wspr, 4)
        self.dump('wsp', 0, 256, agpr=True)

        NZ = 19
        A4 = v.alloc(96, align=4, name='acc4'); ZR = v.alloc(4 * NZ, align=4, name='zring')
        self.poll_counter(S_CNT5W, 32, t)
        self.stamp('S5')
        a(f"s_lshl_b32 s{ST}, s{CG}, 2\ns_add_u32 s{ST}, s{ST}, s{WV}\ns_mul_i32 s{ST}, s{ST}, {16 * 6144}\ns_add_u32 s{ST}, s{ST}, {Z2B}")
        zt = {}

        def zload(j):
            a(f"buffer_load_dwordx4 {vr(ZR + 4 * (j % NZ), 4)}, v{vl16}, {srd(S_WS)}, s{ST} offen offset:{1024 * (j & 3)} sc1")
            zt[j] = a.vmtok()
            if (j & 3) == 3:
                a(f"s_add_u32 s{ST}, s{ST}, 4096")
        for j in range(NZ - 1):
            zload(j)
        for j in range(96):
            s, T = divmod(j, 6)
            a.wait(vm=zt[j])
            for tt in range(4):
                d = vr(A4 + 4 * (4 * T + tt), 4)
                a(f"v_mfma_f32_16x16x32_bf16 {d}, {vr(ZR + 4 * (j % NZ), 4)}, {ar((tt * 16 + s) * 4, 4)}, {d if s else '0'}")
                if tt == 0 and j + NZ - 1 < 96:
                    zload(j + NZ - 1)
        v.free(ZR, 4 * NZ)
        self.stamp('P4')
        a("s_barrier")
        a(f"s_mul_i32 s{ST + 2}, s{WV}, {192 * 1280}\ns_mul_i32 s{ST + 1}, s{CG}, 160\ns_add_u32 s{ST + 2}, s{ST + 2}, s{ST + 1}")
        a(f"s_mul_i32 s{ST + 3}, s{WV}, 30720")
        for k in range(6):
            self.dma_slot(OD, S_WOUT, ST + 2, (f"s{ST + 3}", 5120 * k))
            a(f"s_add_u32 s{ST + 2}, s{ST + 2}, {32 * 1280}")
        v.free(OD, 5)
        ra = v.alloc(4, name='ra'); RT = v.alloc(36, align=4, name='rt')
        for k in range(1, 4):
            a(f"s_add_u32 s{ST}, s{WV}, {k}\ns_and_b32 s{ST}, s{ST}, 3\ns_mul_i32 s{ST}, s{ST}, 9216\ns_add_u32 s{ST}, s{ST}, {L_RED + 3072 * (k - 1)}")
            a(f"v_add_u32 v{ra + k}, s{ST}, v{vl16}")
        a(f"s_mul_i32 s{ST}, s{WV}, 9216\ns_add_u32 s{ST}, s{ST}, {L_RED}\nv_add_u32 v{ra}, s{ST}, v{vl16}")
        for rnd in range(2):
            if rnd:
                a("s_barrier")
            for k in range(1, 4):
                for Tp in range(3):
                    a(f"ds_write_b128 v{ra + k}, {vr(A4 + 4 * (4 * (3 * rnd + Tp) + k), 4)} offset:{1024 * Tp}")
            a.wait_all(vm=False)
            a("s_barrier")
            for k in range(3):
                for Tp in range(3):
                    a(f"ds_read_b128 {vr(RT + 4 * (3 * k + Tp), 4)}, v{ra} offset:{3072 * k + 1024 * Tp}")
            a.wait_all(vm=False)
            for Tp in range(3):
                d = A4 + 16 * (3 * rnd + Tp)
                for i in range(0, 4, 2):
                    a(f"v_pk_add_f32 {vr(RT + 4 * Tp + i, 2)}, {vr(RT + 4 * Tp + i, 2)}, {vr(RT + 12 + 4 * Tp + i, 2)}")
                    a(f"v_pk_add_f32 {vr(d + i, 2)}, {vr(d + i, 2)}, {vr(RT + 24 + 4 * Tp + i, 2)}")
                for i in range(0, 4, 2):
                    a(f"v_pk_add_f32 {vr(d + i, 2)}, {vr(d + i, 2)}, {vr(RT + 4 * Tp + i, 2)}")
        a(f"v_mov_b32 v{t}, v{self.vb}")
        for T in range(6):
            d = A4 + 16 * T
            for i in range(0, 4, 2):
                a(f"v_pk_add_f32 {vr(d + i, 2)}, {vr(d + i, 2)}, {vr(t, 2)} op_sel_hi:[1,0]")
            for i in range(0, 4, 2):
                a(f"v_pk_mul_f32 {vr(d + i, 2)}, {vr(d + i, 2)}, {vr(Z + 4 * T + i, 2)}")
            a(f"v_cvt_pk_bf16_f32 v{RT + 2 * T}, v{d}, v{d + 1}\nv_cvt_pk_bf16_f32 v{RT + 2 * T + 1}, v{d + 2}, v{d + 3}")
        S_UB = S_KA + 4
        a(f"s_lshl_b32 s{S_UB}, s{RB}, 2\ns_add_u32 s{S_UB}, s{S_UB}, s{WV}\ns_mul_i32 s{S_UB}, s{S_UB}, 24576\ns_add_u32 s{S_UB}, s{S_UB}, {UBUF}")
        a(f"s_mul_i32 s{ST}, s{CG}, 3072\ns_add_u32 s{ST}, s{ST}, s{S_UB}")
        for p in range(3):
            a(f"buffer_store_dwordx4 {vr(RT + 4 * p, 4)}, v{vl16}, {srd(S_WS)}, s{ST} offen offset:{1024 * p} sc1")
        a.wait_all(ds=False)
        self.signal(S_CNT, vone)
        v.free(ra, 4); v.free(RT, 36); v.free(A4, 96); v.free(Z, 24); v.free(self.vb)
        self.stamp('upub')
        self.maybe_stop('upub')

        a("s_barrier")
        U = v.alloc(96, align=4, name='U'); RING = v.alloc(32, align=4, name='ring'); A5 = v.alloc(20, align=4, name='a5')
        GB = v.alloc(20, align=4, name='gb')
        a(f"v_bfe_u32 v{t}, v{L}, 2, 2\nv_lshl_add_u32 v{t}, v{G}, 2, v{t}\nv_mul_u32_u24 v{t}, 160, v{t}")
        a(f"v_and_b32 v{t + 1}, 3, v{L}\nv_lshl_add_u32 v{tb}, v{t + 1}, 3, v{t}\nv_add_u32 v{tb + 1}, 0x10000, v{tb}")
        for T in range(5):
            a(f"ds_read_b128 {vr(GB + 4 * T, 4)}, v{ob} offset:{960 + 64 * T}")
        a.wait_all(vm=False)
        self.poll_counter(S_CNT, 24, t)
        self.stamp('S6')
        utok = []
        for ks in range(24):
            a(f"buffer_load_dwordx4 {vr(U + 4 * ks, 4)}, v{vl16}, {srd(S_WS)}, s{S_UB} offen offset:{1024 * (ks & 3)} sc1")
            utok.append(a.vmtok())
            if (ks & 3) == 3:
                a(f"s_add_u32 s{S_UB}, s{S_UB}, 4096")
        jobs = []; hooks = {}
        for ks in range(24):
            hooks[len(jobs)] = (lambda ks=ks: a.wait(vm=utok[ks]))
            for T in range(5):
                rd = []
                for h in range(2):
                    b, o = self.ldsoff([tb, tb + 1], (32 * ks + 16 * h) * 160 + 32 * T)
                    rd.append((2 * h, 2, f"ds_read_b64_tr_b16 {{dst}}, v{b} offset:{o}"))
                d = vr(A5 + 4 * T, 4)
                jobs.append((rd, f"v_mfma_f32_16x16x32_bf16 {d}, {{f}}, {vr(U + 4 * ks, 4)}, {d if ks else '0'}"))
        self.stream(jobs, RING, 8, la=5, hooks=hooks, ringk='v')
        a(f"v_and_b32 v{t}, 1, v{G}\nv_lshlrev_b32 v{t}, 5, v{t}\nv_lshrrev_b32 v{t + 1}, 1, v{G}\nv_lshl_add_u32 v{t}, v{t + 1}, 4, v{t}")
        a(f"v_mul_u32_u24 v{t + 1}, 1280, v{N}\nv_add_u32 v{t}, v{t}, v{t + 1}\nv_lshl_add_u32 v{t + 1}, v{G}, 3, v{t + 1}")
        a(f"s_lshl_b32 s{ST}, s{RB}, 2\ns_add_u32 s{ST}, s{ST}, s{WV}\ns_mul_i32 s{ST}, s{ST}, 20480\ns_mul_i32 s{ST + 1}, s{CG}, 160\ns_add_u32 s{ST}, s{ST}, s{ST + 1}")
        for i in range(0, 20, 2):
            a(f"v_pk_fma_f32 {vr(A5 + i, 2)}, {vr(A5 + i, 2)}, {vr(GB + i, 2)}, {vr(X1 + i, 2)}")
        for i in range(10):
            a(f"v_cvt_pk_bf16_f32 v{RING + i}, v{A5 + 2 * i}, v{A5 + 2 * i + 1}")
        for p in range(2):
            a(f"v_permlane16_swap_b32 v{RING + 4 * p}, v{RING + 4 * p + 2}\nv_permlane16_swap_b32 v{RING + 4 * p + 1}, v{RING + 4 * p + 3}")
        a(f"buffer_store_dwordx4 {vr(RING, 4)}, v{t}, {srd(S_OUT)}, s{ST} offen")
        a(f"buffer_store_dwordx4 {vr(RING + 4, 4)}, v{t}, {srd(S_OUT)}, s{ST} offen offset:64")
        a(f"buffer_store_dwordx2 {vr(RING + 8, 2)}, v{t + 1}, {srd(S_OUT)}, s{ST} offen offset:128")
        self.stamp('end')


if __name__ == '__main__':
    import argparse, json
    p = argparse.ArgumentParser()
    p.add_argument('-o', default='k.s')
    p.add_argument('--stop'); p.add_argument('--stamps', action='store_true'); p.add_argument('--dumps', default='')
    p.add_argument('--mapping', default='B')
    args = p.parse_args()
    g = Gen(stop=args.stop, stamps=args.stamps, dumps=tuple(x for x in args.dumps.split(',') if x), mapping=args.mapping)
    s = g.build()
    open(args.o, 'w').write(s)
    json.dump({'stamps': g.stamp_names, 'dumps': g.dump_info, 'mapping': args.mapping}, open(args.o + '.json', 'w'))
    print('lines', s.count('\n'), 'bytes', len(s), 'vgpr hi', g.v.hi, 'nops added', g.a.nops_added)
```

```python
import sys
from asmlib import *

KN = 'adaLN_cond__linear_kernel_hedgehog__mixer_gmlp__prompt_kernel'

EPOCH = 0
RDY = 0x1000
MODG = 0x2000
CNT = 0x12000
CNT5 = 0x16000
KV2 = 0x18000
STA = 0x28000
STB = 0x48000
KV1 = 0x100000
OBUF = 0x500000
H2B = 0x800000
Z2B = 0xB00000
UBUF = 0xE00000
DIAG = 0x1200000
DUMP = 0x1400000
WS_SIZE = 0x10000000
OOB = 0x40000000

L_WA = 0
L_XS = 61440
L_SA = 143360
L_C1 = 145920
L_WT = 148480
L_ZERO = 152320
L_KT = 153728
L_MRED = 160448
L_OWN = 161536
L_PK = 20480
L_V = 40960
L_RED = 122880
LDS_SIZE = 163840

S_X, S_W, S_WO, S_WIN, S_WSP, S_WOUT, S_WS, S_OUT, S_WMOD, S_C, S_PHI, S_BSP = [4 + 4 * i for i in range(12)]
S_KA = 52
RB, CG, WV, TAG, TMO = 80, 81, 82, 83, 84
S_L2E = 86
ST = 88
S_STAMP = 96
SPIN_LIMIT = 1 << 17

LOG2E = 0x3fb8aa3b


def srd(x):
    return sr(x, 4)


class Gen:
    def __init__(self, stop=None, stamps=False, dumps=(), mapping='B', dbgout=None):
        self.dbgout = dbgout
        self.a = Asm()
        self.v = Regs(256, reserved=[0])
        self.stop = stop
        self.stamps = stamps
        self.dumps = dumps
        self.mapping = mapping
        self.stamp_names = []
        self.dump_info = {}
        self.dump_off = DUMP

    def stamp(self, name):
        if not self.stamps:
            return
        a = self.a
        i = len(self.stamp_names)
        self.stamp_names.append(name)
        a(f"{'s_memtime' if self.stamps == 'clk' else 's_memrealtime'} {sr(S_STAMP, 2)}")
        a.wait_all(vm=False)
        a(f"v_writelane_b32 v{self.vstamp}, s{S_STAMP}, {i}")

    def dump(self, name, base, n, agpr=False):
        if name not in self.dumps:
            return
        a = self.a
        t = self.v.alloc(2, name='dumpt')
        a("s_nop 15")
        a(f"s_lshl_b32 s{ST}, s2, 2\ns_add_u32 s{ST}, s{ST}, s{WV}\ns_mul_i32 s{ST}, s{ST}, {n * 256}")
        a(f"s_add_u32 s{ST}, s{ST}, {self.dump_off}")
        a(f"v_lshlrev_b32 v{t}, 2, v{self.lane}")
        for i in range(n):
            src = base + i
            if agpr:
                a(f"v_accvgpr_read_b32 v{t + 1}, a{base + i}")
                src = t + 1
            a(f"buffer_store_dword v{src}, v{t}, {srd(S_WS)}, s{ST} offen")
            if agpr:
                a.wait_all(ds=False)
            a(f"s_add_u32 s{ST}, s{ST}, 256")
        a.wait_all(ds=False)
        self.dump_info[name] = (self.dump_off, n)
        self.dump_off += 1024 * n * 256
        self.v.free(t, 2)

    def maybe_stop(self, name):
        if self.stop == name:
            self.a.wait_all()
            self.a("s_branch L_fin")
            self.stopped = True
            raise StopIteration

    def spin_tail(self, loop):
        a = self.a
        a(f"s_add_u32 s{TMO}, s{TMO}, 1\ns_cmp_lt_u32 s{TMO}, {SPIN_LIMIT}\ns_cbranch_scc1 {loop}\ns_branch L_end")

    def poll_counter(self, soff, target, vt):
        a = self.a
        L = a.newlabel('L_poll'); Ld = a.newlabel('L_pdone')
        a(f"s_mov_b32 s{TMO}, 0")
        a.label(L)
        a(f"buffer_load_dword v{vt}, off, {srd(S_WS)}, s{soff} sc1")
        a.wait_all(ds=False)
        a(f"v_readfirstlane_b32 s{ST}, v{vt}")
        a(f"s_cmp_ge_u32 s{ST}, {target}\ns_cbranch_scc1 {Ld}")
        self.spin_tail(L)
        a.label(Ld)

    def signal(self, soff, vone):
        a = self.a
        a("s_mov_b64 exec, 1")
        a(f"buffer_atomic_add v{vone}, off, {srd(S_WS)}, s{soff} sc1")
        a("s_mov_b64 exec, -1")

    def poll_poison(self, loads, regs, vt):
        a = self.a
        L = a.newlabel('L_pp'); Ld = a.newlabel('L_ppdone')
        a(f"s_mov_b32 s{TMO}, 0")
        a.label(L)
        for l in loads:
            a(l)
        a.wait_all(ds=False)
        regs = list(regs)
        if len(regs) == 2:
            a(f"v_max_u32 v{vt}, v{regs[0]}, v{regs[1]}"); rest = []
        else:
            a(f"v_max3_u32 v{vt}, v{regs[0]}, v{regs[1]}, v{regs[2]}"); rest = regs[3:]
        while len(rest) >= 2:
            a(f"v_max3_u32 v{vt}, v{vt}, v{rest[0]}, v{rest[1]}"); rest = rest[2:]
        if rest:
            a(f"v_max_u32 v{vt}, v{vt}, v{rest[0]}")
        a(f"v_cmp_eq_u32 vcc, -1, v{vt}")
        a(f"s_cmp_eq_u64 vcc, 0\ns_cbranch_scc1 {Ld}")
        self.spin_tail(L)
        a.label(Ld)

    def stream(self, jobs, ring, nslot, la=4, hooks=None, ringk='a'):
        a = self.a
        hooks = hooks or {}
        rr = ar if ringk == 'a' else vr
        toks = {}

        def issue(j):
            reads, _ = jobs[j]
            b = ring + 4 * (j % nslot)
            for off, n, text in reads:
                a(text.format(dst=rr(b + off, n)))
            toks[j] = a.dstok()
        n = len(jobs)
        for j in range(min(la, n)):
            issue(j)
        for j in range(n):
            if j in hooks:
                hooks[j]()
            if j + la < n:
                issue(j + la)
            a.wait(ds=toks[j])
            b = ring + 4 * (j % nslot)
            a(jobs[j][1].format(f=rr(b, 4)))

    def ldsoff(self, bases, addr):
        k = addr >> 16
        return bases[k], addr & 0xffff

    def seg160_addr(self, regs, stride, t):
        a = self.a
        for i in range(5):
            a(f"v_add_u32 v{t}, {64 * i}, v{self.lane}")
            a(f"v_mul_u32_u24 v{t + 1}, 6554, v{t}\nv_lshrrev_b32 v{t + 1}, 16, v{t + 1}")
            a(f"v_mul_u32_u24 v{regs + i}, {stride - 160}, v{t + 1}")
            a(f"v_lshl_add_u32 v{regs + i}, v{t}, 4, v{regs + i}")
            if 0 < i < 4:
                a(f"v_subrev_u32 v{regs + i}, {1024 * i}, v{regs + i}")

    def dma_slot(self, regs, srdr, soff, m0src):
        a = self.a
        reg, const = m0src
        a(f"s_add_u32 m0, {reg}, {const}")
        for i in range(4):
            a(f"buffer_load_dwordx4 v{regs + i}, {srd(srdr)}, s{soff} offen offset:{1024 * i} lds")
        a(f"s_add_u32 m0, {reg}, {const + 4096}")
        a(f"buffer_load_dwordx4 v{regs + 4}, {srd(srdr)}, s{soff} offen lds")

    def allred_g(self, x, t):
        a = self.a
        a(f"v_mov_b32 v{t}, v{x}\nv_permlane32_swap_b32 v{x}, v{t}\nv_add_f32 v{x}, v{x}, v{t}")
        a(f"v_mov_b32 v{t}, v{x}\nv_permlane16_swap_b32 v{x}, v{t}\nv_add_f32 v{x}, v{x}, v{t}")

    def softmax_pair(self, P, EP, EN, OUT, t):
        a = self.a
        mx, mn = t, t + 1
        a(f"v_max3_f32 v{mx}, v{P}, v{P + 1}, v{P + 2}\nv_min3_f32 v{mn}, v{P}, v{P + 1}, v{P + 2}")
        for i in range(3, 19, 2):
            a(f"v_max3_f32 v{mx}, v{mx}, v{P + i}, v{P + i + 1}\nv_min3_f32 v{mn}, v{mn}, v{P + i}, v{P + i + 1}")
        a(f"v_max_f32 v{mx}, v{mx}, v{P + 19}\nv_min_f32 v{mn}, v{mn}, v{P + 19}")
        a(f"v_mul_f32 v{mx}, 0x{LOG2E ^ 0x80000000:08x}, v{mx}\nv_mul_f32 v{mn}, 0x{LOG2E:08x}, v{mn}")
        for i in range(0, 20, 2):
            a(f"v_pk_fma_f32 {vr(EP + i, 2)}, {vr(P + i, 2)}, {sr(S_L2E, 2)}, {vr(t, 2)} op_sel:[0,0,0] op_sel_hi:[1,1,0]")
            a(f"v_pk_fma_f32 {vr(EN + i, 2)}, {vr(P + i, 2)}, {sr(S_L2E, 2)}, {vr(t, 2)} op_sel:[0,0,1] op_sel_hi:[1,1,1] neg_lo:[1,0,0] neg_hi:[1,0,0]")
        for i in range(20):
            a(f"v_exp_f32 v{EP + i}, v{EP + i}")
        for i in range(20):
            a(f"v_exp_f32 v{EN + i}, v{EN + i}")
        sp, sn = t + 2, t + 4
        a(f"v_pk_add_f32 {vr(sp, 2)}, {vr(EP, 2)}, {vr(EP + 2, 2)}\nv_pk_add_f32 {vr(sn, 2)}, {vr(EN, 2)}, {vr(EN + 2, 2)}")
        for i in range(4, 20, 2):
            a(f"v_pk_add_f32 {vr(sp, 2)}, {vr(sp, 2)}, {vr(EP + i, 2)}\nv_pk_add_f32 {vr(sn, 2)}, {vr(sn, 2)}, {vr(EN + i, 2)}")
        a(f"v_add_f32 v{sp}, v{sp}, v{sp + 1}\nv_add_f32 v{sn}, v{sn}, v{sn + 1}")
        a(f"v_rcp_f32 v{sp}, v{sp}\nv_rcp_f32 v{sn}, v{sn}")
        for i in range(0, 20, 2):
            a(f"v_pk_mul_f32 {vr(EP + i, 2)}, {vr(EP + i, 2)}, {vr(sp, 2)} op_sel_hi:[1,0]")
        for i in range(0, 20, 2):
            a(f"v_pk_mul_f32 {vr(EN + i, 2)}, {vr(EN + i, 2)}, {vr(sn, 2)} op_sel_hi:[1,0]")
        for i in range(10):
            a(f"v_cvt_pk_bf16_f32 v{OUT + i}, v{EP + 2 * i}, v{EP + 2 * i + 1}")
        for i in range(10):
            a(f"v_cvt_pk_bf16_f32 v{OUT + 10 + i}, v{EN + 2 * i}, v{EN + 2 * i + 1}")

    def phi_transform(self, ACC, KP, PA, wtb):
        a = self.a
        for i in range(10):
            a(f"v_cvt_pk_bf16_f32 v{KP + i}, v{ACC + 2 * i}, v{ACC + 2 * i + 1}")
        a(f"v_mov_b32 v{KP + 10}, 0\nv_mov_b32 v{KP + 11}, 0")
        jobs = []
        for s in range(3):
            for T in range(5):
                rd = [(0, 4, f"ds_read_b128 {{dst}}, v{wtb} offset:{T * 192 + 16 * s}")]
                c = vr(PA + 4 * T, 4) if s else "0"
                jobs.append((rd, f"v_mfma_f32_16x16x32_bf16 {vr(PA + 4 * T, 4)}, {{f}}, {vr(KP + 4 * s, 4)}, {c}"))
        self.stream(jobs, 0, 8, la=6)

    def gelu(self, Z, n, T0, T1):
        a = self.a
        import struct
        k0 = -2.0 * 1.4426950408889634 * 0.7978845608028654
        k1 = k0 * 0.044715
        b = lambda x: struct.unpack('<I', struct.pack('<f', x))[0]
        a(f"s_mov_b32 s{ST}, 0x{b(k1):08x}\ns_mov_b32 s{ST + 1}, 0x{b(k1):08x}")
        a(f"v_mov_b32 v{T1}, 0x{b(k0):08x}\nv_mov_b32 v{T1 + 1}, 1.0")
        for i in range(0, n, 2):
            a(f"v_pk_mul_f32 {vr(T0 + i, 2)}, {vr(Z + i, 2)}, {vr(Z + i, 2)}")
        for i in range(0, n, 2):
            a(f"v_pk_fma_f32 {vr(T0 + i, 2)}, {vr(T0 + i, 2)}, {sr(ST, 2)}, {vr(T1, 2)} op_sel_hi:[1,1,0]")
        for i in range(0, n, 2):
            a(f"v_pk_mul_f32 {vr(T0 + i, 2)}, {vr(T0 + i, 2)}, {vr(Z + i, 2)}")
        for i in range(n):
            a(f"v_exp_f32 v{T0 + i}, v{T0 + i}")
        for i in range(0, n, 2):
            a(f"v_pk_add_f32 {vr(T0 + i, 2)}, {vr(T0 + i, 2)}, {vr(T1, 2)} op_sel:[0,1] op_sel_hi:[1,1]")
        for i in range(n):
            a(f"v_rcp_f32 v{T0 + i}, v{T0 + i}")
        for i in range(0, n, 2):
            a(f"v_pk_mul_f32 {vr(Z + i, 2)}, {vr(Z + i, 2)}, {vr(T0 + i, 2)}")

    def mean_rstd(self, s1, s2, n, out_rstd, out_nb):
        a = self.a
        import struct
        b = lambda x: struct.unpack('<I', struct.pack('<f', x))[0]
        a(f"v_mul_f32 v{s1}, 0x{b(1.0 / n):08x}, v{s1}")
        a(f"v_mul_f32 v{s2}, 0x{b(1.0 / n):08x}, v{s2}")
        a(f"v_fma_f32 v{s2}, -v{s1}, v{s1}, v{s2}")
        a(f"v_max_f32 v{s2}, 0, v{s2}")
        a(f"v_add_f32 v{s2}, 0x{b(1e-5):08x}, v{s2}")
        a(f"v_rsq_f32 v{out_rstd}, v{s2}")
        a(f"v_mul_f32 v{out_nb}, -v{s1}, v{out_rstd}")

    def act_loads_640(self, base, F, voff16, voff8):
        a = self.a
        toks = []
        a(f"s_lshl_b32 s{ST}, s{RB}, 2\ns_add_u32 s{ST}, s{ST}, s{WV}\ns_mul_i32 s{ST}, s{ST}, 20480\ns_add_u32 s{ST}, s{ST}, {base}")
        for m in range(4):
            for h in range(2):
                for sp in range(2):
                    a(f"buffer_load_dwordx4 {vr(F + 20 * m + 8 * h + 4 * sp, 4)}, v{voff16}, {srd(S_WS)}, s{ST} offen offset:{1024 * sp} sc1")
                    toks.append(a.vmtok())
                a(f"buffer_load_dwordx2 {vr(F + 20 * m + 16 + 2 * h, 2)}, v{voff8}, {srd(S_WS)}, s{ST} offen offset:2048 sc1")
                if h == 1:
                    toks.append(a.vmtok())
                a(f"s_add_u32 s{ST}, s{ST}, 2560")
        return toks

    def act_store_80(self, base, P, voff16, voff8):
        a = self.a
        a(f"s_lshl_b32 s{ST}, s{RB}, 2\ns_add_u32 s{ST}, s{ST}, s{WV}\ns_lshl_b32 s{ST}, s{ST}, 3\ns_add_u32 s{ST}, s{ST}, s{CG}")
        a(f"s_mul_i32 s{ST}, s{ST}, 2560\ns_add_u32 s{ST}, s{ST}, {base}")
        a(f"buffer_store_dwordx4 {vr(P, 4)}, v{voff16}, {srd(S_WS)}, s{ST} offen sc1")
        a(f"buffer_store_dwordx4 {vr(P + 4, 4)}, v{voff16}, {srd(S_WS)}, s{ST} offen offset:1024 sc1")
        a(f"buffer_store_dwordx2 {vr(P + 8, 2)}, v{voff8}, {srd(S_WS)}, s{ST} offen offset:2048 sc1")

    def wsp_setup(self):
        a = self.a; v = self.v
        self.wspd = v.alloc(2, name='wspd'); self.wspr = v.alloc(4, name='wspr')
        t = v.alloc(3, name='t')
        L = self.lane
        for hb in range(2):
            a(f"v_lshrrev_b32 v{t}, 3, v{L}\nv_add_u32 v{t}, {8 * hb}, v{t}")
            a(f"v_lshrrev_b32 v{t + 1}, 1, v{t}\nv_xor_b32 v{t + 1}, v{t + 1}, v{L}\nv_and_b32 v{t + 1}, 7, v{t + 1}")
            a(f"v_lshlrev_b32 v{t}, 12, v{t}\nv_lshl_add_u32 v{self.wspd + hb}, v{t + 1}, 4, v{t}")
            if hb:
                a(f"v_subrev_u32 v{self.wspd + hb}, 1024, v{self.wspd + hb}")
        n, g = self.vn, self.vg
        a(f"v_lshrrev_b32 v{t}, 1, v{n}\nv_and_b32 v{t + 1}, 2, v{g}\nv_xor_b32 v{t}, v{t}, v{t + 1}")
        a(f"v_and_b32 v{t + 1}, 7, v{n}\nv_lshl_add_u32 v{t}, v{t + 1}, 3, v{t}\nv_lshlrev_b32 v{t}, 4, v{t}")
        a(f"v_lshrrev_b32 v{t + 1}, 3, v{n}\nv_lshl_add_u32 v{t}, v{t + 1}, 10, v{t}")
        a(f"v_and_b32 v{t + 1}, 1, v{g}\nv_lshl_add_u32 v{t}, v{t + 1}, 3, v{t}")
        for k, x in enumerate((0, 1, 4, 5)):
            a(f"v_xor_b32 v{self.wspr + k}, {16 * x}, v{t}")
        v.free(t, 3)
        self.wsp_next = 0
        self.wsp_base = None

    def wsp_rebase(self, base):
        a = self.a
        a(f"s_lshl_b32 s{ST + 6}, s{WV}, 13\ns_add_u32 s{ST + 6}, s{ST + 6}, {base}")
        if self.wsp_base is None:
            for k in range(4):
                a(f"v_add_u32 v{self.wspr + k}, s{ST + 6}, v{self.wspr + k}")
        elif base != self.wsp_base:
            for k in range(4):
                a(f"v_add_u32 v{self.wspr + k}, {(base - self.wsp_base) & 0xffffffff}, v{self.wspr + k}")
        self.wsp_base = base

    def wsp_issue(self):
        a = self.a
        r = self.wsp_next
        ttp, q = r >> 1, r & 1
        t = ST + 4
        a(f"s_add_u32 s{t}, s{WV}, {ttp}\ns_and_b32 s{t}, s{t}, 3\ns_lshl_b32 s{t}, s{t}, 4")
        a(f"s_lshl_b32 s{t + 1}, s{RB}, 6\ns_add_u32 s{t}, s{t}, s{t + 1}\ns_lshl_b32 s{t}, s{t}, 12")
        a(f"s_lshl_b32 s{t + 1}, s{WV}, 10\ns_add_u32 s{t}, s{t}, s{t + 1}")
        if q:
            a(f"s_add_u32 s{t}, s{t}, 512")
        a(f"s_lshl_b32 s{ST + 6}, s{WV}, 13\ns_add_u32 s{ST + 6}, s{ST + 6}, {self.wsp_base}")
        for sp in range(4):
            a(f"s_add_u32 m0, s{ST + 6}, {2048 * sp}")
            a(f"buffer_load_dwordx4 v{self.wspd}, {srd(S_WSP)}, s{t} offen lds")
            a(f"buffer_load_dwordx4 v{self.wspd + 1}, {srd(S_WSP)}, s{t} offen offset:1024 lds")
            a(f"s_add_u32 s{t}, s{t}, 128")
        self.wsp_tok = a.vmtok()

    def wsp_read(self):
        a = self.a
        r = self.wsp_next
        ttp, q = r >> 1, r & 1
        a.wait(vm=self.wsp_tok)
        for sp in range(4):
            for sl in range(2):
                s = 8 * q + 2 * sp + sl
                for pc in range(2):
                    a(f"ds_read_b64 {ar((ttp * 16 + s) * 4 + 2 * pc, 2)}, v{self.wspr + 2 * sl + pc} offset:{2048 * sp}")
            if sp == 1:
                a.wait_all(vm=False)
        a.wait_all(vm=False)
        self.wsp_next += 1

    def wsp_rounds(self, n):
        for _ in range(n):
            self.wsp_issue()
            self.wsp_read()

    def build(self):
        try:
            self.body()
        except StopIteration:
            pass
        a = self.a
        a.label("L_fin")
        if self.stamps:
            t = 1
            a("s_nop 15")
            a(f"s_lshl_b32 s{ST}, s2, 2\ns_add_u32 s{ST}, s{ST}, s{WV}\ns_lshl_b32 s{ST}, s{ST}, 8\ns_add_u32 s{ST}, s{ST}, {DIAG}")
            a(f"v_lshlrev_b32 v0, 2, v{self.lane}")
            a(f"buffer_store_dword v{self.vstamp}, v0, {srd(S_WS)}, s{ST} offen")
            if self.dbgout is not None:
                a(f"s_cmp_lg_u32 s2, {self.dbgout}\ns_cbranch_scc1 L_end\ns_cmp_lg_u32 s{WV}, 0\ns_cbranch_scc1 L_end")
                a(f"s_load_dwordx2 s[4:5], s[0:1], 96\ns_waitcnt lgkmcnt(0)\ns_and_b32 s5, s5, 0xffff\ns_mov_b32 s6, 256\ns_mov_b32 s7, 0x20000")
                a(f"v_readlane_b32 s8, v{self.vstamp}, 0\ns_nop 3\nv_subrev_u32 v{self.vstamp}, s8, v{self.vstamp}")
                a(f"v_lshlrev_b32 v0, 1, v{self.lane}\nv_and_b32 v{self.vn}, 1, v{self.lane}\nv_xor_b32 v{self.vn}, 1, v{self.vn}\nv_lshl_add_u32 v0, v{self.vn}, 20, v0\nv_and_b32 v0, -4, v0")
                a(f"buffer_store_dword v{self.vstamp}, v0, s[4:7], 0 offen")
        a.label("L_end")
        a("s_endpgm")
        hdr = open('adaLN_cond__linear_kernel_hedgehog__mixer_gmlp__prompt.s.ref').read().split('\n')
        hdr = [l for l in hdr if l.startswith(';') and '@launch' not in l and 'Override' not in l and 'grid=ceil' not in l]
        s = "\n".join(hdr) + f"\n; @launch grid=(256,1,1) block=(256,1,1) lds={LDS_SIZE}\n"
        s += '.amdgcn_target "amdgcn-amd-amdhsa--gfx950"\n' + kernel_header(KN) + a.text() + kernel_desc(KN, 512, 102, 256)
        return s

    def body(self):
        a = self.a; v = self.v
        a("s_cmp_ge_u32 s2, 256\ns_cbranch_scc1 L_end")
        a(f"s_load_dwordx16 {sr(S_KA, 16)}, s[0:1], 0")
        a(f"s_load_dwordx8 {sr(S_KA + 16, 8)}, s[0:1], 64")
        a(f"s_load_dwordx4 {sr(S_KA + 24, 4)}, s[0:1], 96")
        self.lane = v.alloc(name='lane'); self.vn = v.alloc(name='n'); self.vg = v.alloc(name='g')
        L, N, G = self.lane, self.vn, self.vg
        if self.stamps:
            self.vstamp = v.alloc(name='stamp')
            a(f"v_mov_b32 v{self.vstamp}, 0")
        a(f"v_and_b32 v{L}, 63, v0\nv_lshrrev_b32 v{G}, 6, v0")
        a(f"v_and_b32 v{N}, 15, v0")
        a(f"v_readfirstlane_b32 s{WV}, v{G}")
        a(f"v_bfe_u32 v{G}, v0, 4, 2")
        a(f"s_and_b32 s{ST}, s2, 7\ns_lshr_b32 s{ST + 1}, s2, 3")
        if self.mapping == 'A':
            a(f"s_lshl_b32 s{RB}, s{ST}, 2\ns_lshr_b32 s{CG}, s{ST + 1}, 3\ns_add_u32 s{RB}, s{RB}, s{CG}\ns_and_b32 s{CG}, s{ST + 1}, 7")
        else:
            a(f"s_lshr_b32 s{RB}, s{ST}, 1\ns_lshl_b32 s{RB}, s{RB}, 3\ns_lshr_b32 s{CG}, s{ST + 1}, 2\ns_add_u32 s{RB}, s{RB}, s{CG}")
            a(f"s_and_b32 s{CG}, s{ST}, 1\ns_lshl_b32 s{CG}, s{CG}, 2\ns_and_b32 s{ST + 1}, s{ST + 1}, 3\ns_add_u32 s{CG}, s{CG}, s{ST + 1}")
        a(f"s_mov_b32 s{S_L2E}, 0x{LOG2E:08x}\ns_mov_b32 s{S_L2E + 1}, 0x{LOG2E:08x}")
        WM = v.alloc(40, align=4, name='wm'); CV = v.alloc(10, name='cv', hi=True); t = v.alloc(6, align=2, name='t')
        vep = v.alloc(name='ep', hi=True)
        a(f"s_cmp_ge_u32 s2, 60\ns_cselect_b32 s{ST + 2}, 1, 0\ns_mul_i32 s{ST + 3}, s{ST + 2}, 60\ns_sub_u32 s{ST + 3}, s2, s{ST + 3}")
        a(f"s_mul_i32 s{ST + 4}, s{ST + 2}, 320\ns_mul_i32 s{ST + 5}, s{WV}, 80\ns_add_u32 s{ST + 4}, s{ST + 4}, s{ST + 5}")
        a(f"v_lshrrev_b32 v{t}, 3, v{L}\nv_and_b32 v{t + 1}, 7, v{L}")
        a(f"v_mul_u32_u24 v{t + 2}, 7680, v{t}\nv_lshl_add_u32 v{t + 2}, v{t + 1}, 4, v{t + 2}")
        a(f"v_lshlrev_b32 v{t + 3}, 1, v{t}")
        a(f"s_mul_i32 s{ST + 5}, s{ST + 4}, 7680\ns_lshl_b32 s{ST + 6}, s{ST + 3}, 7\ns_add_u32 s{ST + 5}, s{ST + 5}, s{ST + 6}")
        a(f"s_lshl_b32 s{ST + 4}, s{ST + 4}, 1")
        a("s_waitcnt lgkmcnt(0)")
        sizes = {S_X: (0, 2048 * 1280), S_W: (1, 640 * 3840), S_PHI: (2, 32 * 800), S_WO: (3, 640 * 1280), S_WIN: (5, 640 * 3072),
                 S_WSP: (6, 2048 * 4096), S_BSP: (7, 4096), S_WOUT: (8, 768 * 1280), S_C: (9, 1280), S_WMOD: (10, 640 * 7680),
                 S_OUT: (11, 2048 * 1280), S_WS: (13, WS_SIZE)}

        def mk(x):
            i, n = sizes[x]
            a(f"s_mov_b32 s{x}, s{S_KA + 2 * i}\ns_and_b32 s{x + 1}, s{S_KA + 2 * i + 1}, 0xffff\ns_mov_b32 s{x + 2}, {n}\ns_mov_b32 s{x + 3}, 0x20000")
        for x in (S_WS, S_C, S_WMOD):
            mk(x)
        self.stamp('start')
        a(f"buffer_load_dword v{vep}, off, {srd(S_WS)}, 0 sc1")
        Lnp = a.newlabel('L_np')
        a(f"s_cmp_ge_u32 s2, 120\ns_cbranch_scc1 {Lnp}")
        for i in range(10):
            a(f"buffer_load_ushort v{CV + i}, v{t + 3}, {srd(S_C)}, s{ST + 4} offen offset:{16 * i}")
        tok_c = a.vmtok()
        for i in range(10):
            a(f"buffer_load_dwordx4 {vr(WM + 4 * i, 4)}, v{t + 2}, {srd(S_WMOD)}, s{ST + 5} offen")
            a(f"s_add_u32 s{ST + 5}, s{ST + 5}, {8 * 7680}")
        a.label(Lnp)
        KS, CB64 = S_KA + 26, S_KA + 27
        for x in (S_X, S_W, S_PHI, S_WO, S_WIN, S_WSP, S_BSP, S_WOUT, S_OUT):
            mk(x)
        a(f"s_mov_b32 s{KS}, s{ST + 2}\ns_mov_b32 s{CB64}, s{ST + 3}")
        PZ = v.alloc(4, align=4, name='poison', hi=True); vl16 = v.alloc(name='l16'); vl8 = v.alloc(name='l8')
        self.vl16, self.vl8 = vl16, vl8
        for i in range(4):
            a(f"v_mov_b32 v{PZ + i}, -1")
        a(f"v_lshlrev_b32 v{vl16}, 4, v{L}\nv_lshlrev_b32 v{vl8}, 3, v{L}")
        a(f"s_mul_i32 s{ST}, s{CG}, 30\ns_add_u32 s{ST}, s{ST}, s{RB}\ns_mul_i32 s{ST}, s{ST}, 14336\ns_mul_i32 s{ST + 1}, s{WV}, 3584")
        a(f"s_add_u32 s{ST}, s{ST}, s{ST + 1}\ns_add_u32 s{ST}, s{ST}, {KV1}")
        a(f"s_cmp_lt_u32 s{RB}, 30\ns_cselect_b32 s{ST + 1}, 0, {OOB}\nv_add_u32 v{t + 5}, s{ST + 1}, v{vl16}")
        a(f"v_cmp_gt_u32 vcc, 32, v{L}\nv_mov_b32 v{t + 4}, {OOB}\nv_cndmask_b32 v{t + 4}, v{t + 4}, v{t + 5}, vcc")
        for i in range(3):
            a(f"buffer_store_dwordx4 {vr(PZ, 4)}, v{t + 5}, {srd(S_WS)}, s{ST} offen offset:{1024 * i} sc1")
        a(f"buffer_store_dwordx4 {vr(PZ, 4)}, v{t + 4}, {srd(S_WS)}, s{ST} offen offset:3072 sc1")
        a(f"s_lshl_b32 s{ST}, s{RB}, 2\ns_add_u32 s{ST}, s{ST}, s{WV}\ns_lshl_b32 s{ST}, s{ST}, 3\ns_add_u32 s{ST}, s{ST}, s{CG}\ns_lshl_b32 s{ST}, s{ST}, 7")
        a(f"s_add_u32 s{ST + 1}, s{ST}, {STB - 128}\ns_add_u32 s{ST}, s{ST}, {STA}")
        a(f"s_lshl_b32 s{ST + 2}, s{CG}, 13\ns_mul_i32 s{ST + 3}, s{RB}, 224\ns_add_u32 s{ST + 2}, s{ST + 2}, s{ST + 3}\ns_add_u32 s{ST + 2}, s{ST + 2}, {KV2 - 256}")
        a(f"s_cmp_lt_u32 s{RB}, 30\ns_cselect_b32 s{ST + 2}, s{ST + 2}, {OOB}\ns_cmp_eq_u32 s{WV}, 0\ns_cselect_b32 s{ST + 2}, s{ST + 2}, {OOB}")
        a(f"v_mov_b32 v{t + 4}, {OOB}\nv_mov_b32 v{t + 5}, s{ST + 2}\nv_cmp_gt_u32 vcc, 30, v{L}\nv_cndmask_b32 v{t + 4}, v{t + 4}, v{t + 5}, vcc")
        a(f"v_mov_b32 v{t + 5}, s{ST + 1}\nv_cmp_gt_u32 vcc, 16, v{L}\nv_cndmask_b32 v{t + 4}, v{t + 4}, v{t + 5}, vcc")
        a(f"v_mov_b32 v{t + 5}, s{ST}\nv_cmp_gt_u32 vcc, 8, v{L}\nv_cndmask_b32 v{t + 4}, v{t + 4}, v{t + 5}, vcc")
        a(f"v_add_u32 v{t + 4}, v{t + 4}, v{vl16}")
        a(f"buffer_store_dwordx4 {vr(PZ, 4)}, v{t + 4}, {srd(S_WS)}, 0 offen sc1")
        a(f"s_lshl_b32 s{ST}, s{RB}, 2\ns_add_u32 s{ST}, s{ST}, s{WV}\ns_lshl_b32 s{ST}, s{ST}, 7\ns_add_u32 s{ST}, s{ST}, {CNT}")
        S_CNT = S_KA + 8
        S_CNT5W = S_KA + 9
        a(f"s_mov_b32 s{S_CNT}, s{ST}")
        a(f"s_cmp_eq_u32 s{CG}, 0\ns_cselect_b32 s{ST}, s{ST}, {OOB}")
        a(f"s_lshl_b32 s{ST + 1}, s{CG}, 2\ns_add_u32 s{ST + 2}, s{ST + 1}, s{WV}\ns_lshl_b32 s{ST + 2}, s{ST + 2}, 7\ns_add_u32 s{S_CNT5W}, s{ST + 2}, {CNT5}")
        a(f"s_add_u32 s{ST + 1}, s{ST + 1}, s{RB}\ns_lshl_b32 s{ST + 1}, s{ST + 1}, 7\ns_add_u32 s{ST + 1}, s{ST + 1}, {CNT5}")
        a(f"s_cmp_lt_u32 s{RB}, 4\ns_cselect_b32 s{ST + 1}, s{ST + 1}, {OOB}\ns_cmp_eq_u32 s{WV}, 0\ns_cselect_b32 s{ST + 1}, s{ST + 1}, {OOB}")
        a(f"v_mov_b32 v{t + 4}, {OOB}\nv_mov_b32 v{t + 5}, s{ST + 1}\nv_cmp_eq_u32 vcc, 1, v{L}\nv_cndmask_b32 v{t + 4}, v{t + 4}, v{t + 5}, vcc")
        a(f"v_mov_b32 v{t + 5}, s{ST}\nv_cmp_eq_u32 vcc, 0, v{L}\nv_cndmask_b32 v{t + 4}, v{t + 4}, v{t + 5}, vcc")
        a(f"v_mov_b32 v{t + 5}, 0")
        a(f"buffer_store_dword v{t + 5}, v{t + 4}, {srd(S_WS)}, 0 offen sc1")
        tok_clr = a.vmtok()
        XD = v.alloc(2, name='xd', hi=True)
        for hb in range(2):
            a(f"v_lshrrev_b32 v{t}, 3, v{L}\nv_add_u32 v{t}, {8 * hb}, v{t}")
            a(f"v_lshrrev_b32 v{t + 1}, 1, v{t}\nv_xor_b32 v{t + 1}, v{t + 1}, v{L}\nv_and_b32 v{t + 1}, 7, v{t + 1}")
            a(f"v_mul_u32_u24 v{t}, 1280, v{t}\nv_lshl_add_u32 v{XD + hb}, v{t + 1}, 4, v{t}")
            if hb:
                a(f"v_subrev_u32 v{XD + hb}, 1024, v{XD + hb}")
        S_XSB = S_KA + 0
        a(f"s_mul_i32 s{S_XSB}, s{WV}, 20480\ns_add_u32 s{S_XSB}, s{S_XSB}, {L_XS}")
        a(f"s_lshl_b32 s{ST}, s{RB}, 2\ns_add_u32 s{ST}, s{ST}, s{WV}\ns_mul_i32 s{ST}, s{ST}, 20480")
        for b in range(10):
            a(f"s_add_u32 m0, s{S_XSB}, {2048 * b}")
            a(f"buffer_load_dwordx4 v{XD}, {srd(S_X)}, s{ST} offen lds")
            a(f"buffer_load_dwordx4 v{XD + 1}, {srd(S_X)}, s{ST} offen offset:1024 lds")
            a(f"s_add_u32 s{ST}, s{ST}, 128")
        tok_x = a.vmtok()
        v.free(XD, 2)
        PH = v.alloc(4, name='phi_ld', at=60); self.vb = v.alloc(name='bsp')
        a(f"s_mul_i32 s{ST}, s{CG}, 3200")
        a(f"v_lshlrev_b32 v{t}, 2, v0")
        for i in range(3):
            a(f"buffer_load_dword v{PH + i}, v{t}, {srd(S_PHI)}, s{ST} offen offset:{1024 * i}")
        a(f"v_min_u32 v{t + 1}, 124, v{t}")
        a(f"buffer_load_dword v{PH + 3}, v{t + 1}, {srd(S_PHI)}, s{ST} offen offset:3072")
        a(f"s_lshl_b32 s{ST}, s{RB}, 2\ns_add_u32 s{ST}, s{ST}, s{WV}\ns_lshl_b32 s{ST}, s{ST}, 5\nv_lshlrev_b32 v{t}, 1, v{N}")
        a(f"buffer_load_ushort v{self.vb}, v{t}, {srd(S_BSP)}, s{ST} offen")
        tok_small = a.vmtok()
        WD = v.alloc(5, name='wd')
        self.seg160_addr(WD, 3840, t)
        S_WOFF = S_KA + 1
        S_WAB = S_KA + 2
        a(f"s_lshr_b32 s{ST}, s{WV}, 1\ns_mul_i32 s{ST}, s{ST}, {32 * 3840}\ns_and_b32 s{ST + 1}, s{WV}, 1\ns_add_u32 s{ST + 1}, s{ST + 1}, 1")
        a(f"s_mul_i32 s{ST + 1}, s{ST + 1}, 1280\ns_add_u32 s{ST}, s{ST}, s{ST + 1}\ns_mul_i32 s{ST + 1}, s{CG}, 160\ns_add_u32 s{S_WOFF}, s{ST}, s{ST + 1}")
        a(f"s_mul_i32 s{S_WAB}, s{WV}, 5120")

        def w_pair(m):
            if m < 3:
                m0 = (f"s{S_WAB}", L_WA + 20480 * m)
            elif m < 7:
                m0 = (f"s{S_XSB}", 5120 * (m - 3))
            else:
                m0 = (f"s{S_WAB}", L_WA + 20480 * (m - 7))
            self.dma_slot(WD, S_W, S_WOFF, m0)
            a(f"s_add_u32 s{S_WOFF}, s{S_WOFF}, {64 * 3840}")
        for m in range(3):
            w_pair(m)
        a(f"v_mov_b32 v{PZ}, 0\nv_mov_b32 v{PZ + 1}, 0\nv_mov_b32 v{PZ + 2}, 0\nv_mov_b32 v{PZ + 3}, 0")
        a(f"v_lshlrev_b32 v{t}, 4, v0\nv_add_u32 v{t}, {L_WT}, v{t}")
        a(f"ds_write_b128 v{t}, {vr(PZ, 4)}")
        a(f"v_min_u32 v{t}, {L_WT + 71 * 16}, v{t}")
        a(f"ds_write_b128 v{t}, {vr(PZ, 4)} offset:4096")
        a.wait(vm=tok_clr) if False else None
        Lnp2 = a.newlabel('L_np2')
        a(f"s_cmp_ge_u32 s2, 120\ns_cbranch_scc1 {Lnp2}")
        a(f"s_waitcnt vmcnt({a.nvm - tok_c})")
        for i in range(10):
            a(f"v_lshlrev_b32 v{CV + i}, 16, v{CV + i}")
        SP = v.alloc(10, name='silu', hi=True)
        for i in range(10):
            a(f"v_mul_f32 v{SP + i}, 0x{LOG2E ^ 0x80000000:08x}, v{CV + i}")
        for i in range(10):
            a(f"v_exp_f32 v{SP + i}, v{SP + i}")
        for i in range(10):
            a(f"v_add_f32 v{SP + i}, 1.0, v{SP + i}")
        for i in range(10):
            a(f"v_rcp_f32 v{SP + i}, v{SP + i}")
        for i in range(10):
            a(f"v_mul_f32 v{CV + i}, v{CV + i}, v{SP + i}")
        for m in range(5):
            a(f"v_cvt_pk_bf16_f32 v{SP + m}, v{CV + 2 * m}, v{CV + 2 * m + 1}")
        AC = CV
        a(f"s_mov_b32 s{ST}, 0x05040100\ns_mov_b32 s{ST + 1}, 0x07060302")
        for i in range(8):
            a(f"v_mov_b32 v{AC + i}, 0")
        for m in range(5):
            a(f"s_waitcnt vmcnt({a.nvm - (tok_c + 2 * m + 2)})")
            A_, B_ = WM + 8 * m, WM + 8 * m + 4
            for d in range(4):
                a(f"v_perm_b32 v{t + (d & 1) * 2}, v{B_ + d}, v{A_ + d}, s{ST}")
                a(f"v_perm_b32 v{t + (d & 1) * 2 + 1}, v{B_ + d}, v{A_ + d}, s{ST + 1}")
                a(f"v_dot2_f32_bf16 v{AC + 2 * d}, v{t + (d & 1) * 2}, v{SP + m}, v{AC + 2 * d}")
                a(f"v_dot2_f32_bf16 v{AC + 2 * d + 1}, v{t + (d & 1) * 2 + 1}, v{SP + m}, v{AC + 2 * d + 1}")
        for i in range(4):
            a(f"v_permlane32_swap_b32 v{AC + 2 * i}, v{AC + 2 * i + 1}")
        for i in range(4):
            a(f"v_add_f32 v{AC + 2 * i}, v{AC + 2 * i}, v{AC + 2 * i + 1}")
        for i in range(2):
            a(f"v_permlane16_swap_b32 v{AC + 4 * i}, v{AC + 4 * i + 2}")
        for i in range(2):
            a(f"v_add_f32 v{AC + 4 * i}, v{AC + 4 * i}, v{AC + 4 * i + 2}")
        a(f"v_and_b32 v{t}, 8, v{L}\nv_cmp_ne_u32 vcc, 0, v{t}")
        a(f"v_cndmask_b32 v{t + 1}, v{AC + 4}, v{AC}, vcc")
        a(f"v_cndmask_b32 v{t + 2}, v{AC}, v{AC + 4}, vcc")
        a(f"v_add_f32_dpp v{t + 2}, v{t + 1}, v{t + 2} row_ror:8 row_mask:0xf bank_mask:0xf")
        a(f"v_lshlrev_b32 v{t}, 2, v0\nv_add_u32 v{t}, {L_MRED}, v{t}")
        a(f"ds_write_b32 v{t}, v{t + 2}")
        a.label(Lnp2)
        v.free(SP, 10); v.free(WM, 40); v.free(PZ, 4)
        a.wait(vm=tok_clr)
        a(f"v_readfirstlane_b32 s{ST}, v{vep}")
        a(f"s_mul_i32 s{TAG}, s{ST}, 0x9E3779B1\ns_add_u32 s{TAG}, s{TAG}, 0x7F4A7C15")
        a.wait_all(vm=False)
        a("s_barrier")
        Lw0 = a.newlabel('L_nw0'); Lnp3 = a.newlabel('L_np3')
        a(f"s_cmp_lg_u32 s{WV}, 0\ns_cbranch_scc1 {Lw0}")
        a(f"v_mov_b32 v{t + 1}, s{TAG}")
        a(f"s_cmp_ge_u32 s2, 120\ns_cbranch_scc1 {Lnp3}")
        a(f"v_lshlrev_b32 v{t + 2}, 2, v{L}")
        for i in range(4):
            a(f"ds_read_b32 v{AC + i}, v{t + 2} offset:{L_MRED - 0 + 256 * i}" if L_MRED + 768 < 65536 else "")
        if L_MRED + 768 >= 65536:
            a(f"v_add_u32 v{t + 2}, {L_MRED}, v{t + 2}")
            for i in range(4):
                a(f"ds_read_b32 v{AC + i}, v{t + 2} offset:{256 * i}")
        a(f"v_and_b32 v{t + 3}, 7, v{L}\nv_lshlrev_b32 v{t + 3}, 3, v{t + 3}")
        a(f"v_bfe_u32 v{t + 4}, v{L}, 5, 1\nv_or_b32 v{t + 3}, v{t + 3}, v{t + 4}")
        a(f"v_bfe_u32 v{t + 4}, v{L}, 4, 1\nv_lshl_or_b32 v{t + 3}, v{t + 4}, 1, v{t + 3}")
        a(f"v_bfe_u32 v{t + 4}, v{L}, 3, 1\nv_lshl_or_b32 v{t + 3}, v{t + 4}, 2, v{t + 3}")
        a(f"v_lshlrev_b32 v{t + 3}, 4, v{t + 3}")
        a(f"s_lshl_b32 s{ST}, s{CB64}, 10\ns_lshl_b32 s{ST + 1}, s{KS}, 3\ns_add_u32 s{ST}, s{ST}, s{ST + 1}\ns_add_u32 s{ST}, s{ST}, {MODG}")
        a("s_waitcnt lgkmcnt(0)")
        a(f"v_add_f32 v{AC}, v{AC}, v{AC + 1}\nv_add_f32 v{AC + 2}, v{AC + 2}, v{AC + 3}\nv_add_f32 v{t}, v{AC}, v{AC + 2}")
        a(f"buffer_store_dwordx2 {vr(t, 2)}, v{t + 3}, {srd(S_WS)}, s{ST} offen sc1")
        a.label(Lnp3)
        a(f"v_mov_b32 v{t + 2}, s{TAG}\nv_mov_b32 v{t + 3}, s{TAG}")
        a(f"s_lshl_b32 s{ST}, s2, 3\ns_add_u32 s{ST}, s{ST}, {RDY}")
        a("s_mov_b64 exec, 1")
        a(f"buffer_store_dwordx2 {vr(t + 2, 2)}, off, {srd(S_WS)}, s{ST} sc1")
        a("s_mov_b64 exec, -1")
        a.label(Lw0)
        a.nvm -= 2; a.ds_done = a.nds
        self.w0_extra = 2
        v.free(CV, 10); v.free(vep)
        self.stamp('modpub')
        a.wait(vm=tok_small)
        for i in range(4):
            if i < 3:
                a(f"v_add_u32 v{t}, {256 * i}, v0")
            else:
                a(f"v_min_u32 v{t}, 31, v0\nv_add_u32 v{t}, 768, v{t}")
            a(f"v_mul_u32_u24 v{t + 1}, 6554, v{t}\nv_lshrrev_b32 v{t + 1}, 16, v{t + 1}")
            a(f"v_mul_u32_u24 v{t + 2}, 10, v{t + 1}\nv_sub_u32 v{t + 2}, v{t}, v{t + 2}")
            a(f"v_mul_u32_u24 v{t + 3}, 205, v{t + 1}\nv_lshrrev_b32 v{t + 3}, 12, v{t + 3}")
            a(f"v_mul_u32_u24 v{t + 4}, 20, v{t + 3}\nv_sub_u32 v{t + 1}, v{t + 1}, v{t + 4}")
            a(f"v_lshl_add_u32 v{t + 4}, v{t + 2}, 1, v{t + 4}")
            a(f"v_mul_u32_u24 v{t + 4}, 48, v{t + 4}\nv_lshl_add_u32 v{t + 4}, v{t + 1}, 1, v{t + 4}\nv_add_u32 v{t + 4}, {L_WT}, v{t + 4}")
            a(f"ds_write_b16 v{t + 4}, v{PH + i}\nds_write_b16_d16_hi v{t + 4}, v{PH + i} offset:48")
        v.free(PH, 4)
        a(f"v_lshlrev_b32 v{self.vb}, 16, v{self.vb}")
        X = v.alloc(160, align=4, name='X'); XR = v.alloc(10, align=2, name='XR'); xb = v.alloc(4, name='xb', hi=True)
        a(f"v_lshrrev_b32 v{t}, 1, v{N}\nv_lshrrev_b32 v{t + 1}, 1, v{G}\nv_xor_b32 v{t}, v{t}, v{t + 1}")
        a(f"v_and_b32 v{t + 1}, 7, v{N}\nv_lshl_add_u32 v{t}, v{t + 1}, 3, v{t}\nv_lshlrev_b32 v{t}, 4, v{t}")
        a(f"v_lshrrev_b32 v{t + 1}, 3, v{N}\nv_lshl_add_u32 v{t}, v{t + 1}, 10, v{t}")
        a(f"v_and_b32 v{t + 1}, 1, v{G}\nv_lshl_add_u32 v{t}, v{t + 1}, 3, v{t}\nv_add_u32 v{t}, s{S_XSB}, v{t}")
        for k in range(4):
            a(f"v_xor_b32 v{xb + k}, {32 * k}, v{t}")
        a.wait_all(vm=False)
        SA_ = v.alloc(4, name='sacc', hi=True)
        for i in range(4):
            a(f"v_mov_b32 v{SA_ + i}, 0")
        a(f"s_mov_b32 s{ST}, 0x3f803f80")
        toks = {}

        def xread(s):
            for pc in range(2):
                a(f"ds_read_b64 {vr(X + 8 * s + 4 * pc + 2, 2)}, v{xb + 2 * (s & 1) + pc} offset:{2048 * (s >> 1)}")
            toks[s] = a.dstok()
        for s in range(6):
            xread(s)
        for s in range(20):
            if s + 6 < 20:
                xread(s + 6)
            a.wait(ds=toks[s])
            for pc in range(2):
                b = X + 8 * s + 4 * pc
                a(f"v_dot2_f32_bf16 v{SA_}, v{b + 2}, s{ST}, v{SA_}\nv_dot2_f32_bf16 v{SA_ + 2}, v{b + 2}, v{b + 2}, v{SA_ + 2}")
                a(f"v_dot2_f32_bf16 v{SA_ + 1}, v{b + 3}, s{ST}, v{SA_ + 1}\nv_dot2_f32_bf16 v{SA_ + 3}, v{b + 3}, v{b + 3}, v{SA_ + 3}")
                a(f"v_lshlrev_b32 v{b}, 16, v{b + 2}\nv_and_b32 v{b + 1}, 0xffff0000, v{b + 2}")
                a(f"v_lshlrev_b32 v{b + 2}, 16, v{b + 3}\nv_and_b32 v{b + 3}, 0xffff0000, v{b + 3}")
        a(f"s_mul_i32 s{ST + 1}, s{CG}, 160")
        a(f"v_lshrrev_b32 v{t + 3}, 1, v{N}")
        a(f"v_and_b32 v{t + 4}, 7, v{N}\nv_lshlrev_b32 v{t + 4}, 7, v{t + 4}\nv_lshrrev_b32 v{t + 5}, 3, v{N}")
        a(f"v_lshl_add_u32 v{t + 4}, v{t + 5}, 10, v{t + 4}\nv_add_u32 v{t + 4}, s{S_XSB}, v{t + 4}")
        for T in range(5):
            a(f"v_lshlrev_b32 v{t}, 3, v{G}\nv_add_u32 v{t}, s{ST + 1}, v{t}")
            if T:
                a(f"v_add_u32 v{t}, {32 * T}, v{t}")
            a(f"v_bfe_u32 v{t + 1}, v{t}, 4, 3\nv_xor_b32 v{t + 1}, v{t + 1}, v{t + 3}")
            a(f"v_lshl_add_u32 v{t + 1}, v{t + 1}, 4, v{t + 4}")
            a(f"v_lshrrev_b32 v{t + 2}, 7, v{t}\nv_lshl_add_u32 v{t + 1}, v{t + 2}, 11, v{t + 1}")
            a(f"v_and_b32 v{t}, 8, v{t}\nv_add_u32 v{t + 1}, v{t + 1}, v{t}")
            a(f"ds_read_b64 {vr(XR + 2 * T, 2)}, v{t + 1}")
        v.free(xb, 4)
        a(f"v_add_f32 v{SA_}, v{SA_}, v{SA_ + 1}\nv_add_f32 v{SA_ + 2}, v{SA_ + 2}, v{SA_ + 3}")
        self.allred_g(SA_, t); self.allred_g(SA_ + 2, t)
        self.mean_rstd(SA_, SA_ + 2, 640, t, t + 1)
        a.wait_all(vm=False)
        for m in range(3, 7):
            w_pair(m)
        for i in range(0, 160, 2):
            a(f"v_pk_fma_f32 {vr(X + i, 2)}, {vr(X + i, 2)}, {vr(t, 2)}, {vr(t, 2)} op_sel:[0,0,1] op_sel_hi:[1,0,1]")
        v.free(SA_, 4)
        self.stamp('ln1')
        self.dump('xhat', X, 160)
        SW = v.alloc(28, align=4, name='sweep'); so = v.alloc(3, name='so', hi=True)
        a(f"v_lshlrev_b32 v{so}, 4, v0")
        a(f"s_mul_i32 s{ST + 1}, s{CG}, 80\ns_add_u32 s{ST + 1}, s{ST + 1}, 1280")

        def own_off(dst, src):
            a(f"v_mul_u32_u24 v{t}, 205, v{src}\nv_lshrrev_b32 v{t}, 14, v{t}")
            a(f"v_mul_u32_u24 v{t}, 560, v{t}\nv_add3_u32 v{t}, v{t}, v{src}, s{ST + 1}\nv_lshlrev_b32 v{dst}, 4, v{t}")
        own_off(so + 1, 0)
        a(f"v_add_u32 v{t + 1}, 256, v0")
        own_off(so + 2, t + 1)
        a(f"v_and_b32 v{t + 1}, 127, v0\nv_lshlrev_b32 v{t + 1}, 4, v{t + 1}\nv_add_u32 v{t + 1}, {(RDY - MODG) & 0xffffffff}, v{t + 1}")
        a(f"v_cmp_gt_u32 vcc, 64, v0\nv_cndmask_b32 v{so + 2}, v{t + 1}, v{so + 2}, vcc")
        a(f"v_add_u32 v{so + 2}, {MODG}, v{so + 2}")
        Ls = a.newlabel('L_sw'); Lsd = a.newlabel('L_swd')
        a(f"s_mov_b32 s{TMO}, 0")
        for i in range(5):
            a(f"s_mov_b32 s{ST + 2 + i}, {MODG + 4096 * i}")
        a.label(Ls)
        for i in range(5):
            a(f"buffer_load_dwordx4 {vr(SW + 4 * i, 4)}, v{so}, {srd(S_WS)}, s{ST + 2 + i} offen sc1")
        a(f"buffer_load_dwordx4 {vr(SW + 20, 4)}, v{so + 1}, {srd(S_WS)}, s{ST + 2} offen sc1")
        a(f"buffer_load_dwordx4 {vr(SW + 24, 4)}, v{so + 2}, {srd(S_WS)}, 0 offen sc1")
        a.wait_all(ds=False)
        a(f"v_min_u32 v{t}, v{SW + 1}, v{SW + 3}\nv_max_u32 v{t + 1}, v{SW + 1}, v{SW + 3}")
        for i in range(1, 7):
            a(f"v_min3_u32 v{t}, v{t}, v{SW + 4 * i + 1}, v{SW + 4 * i + 3}\nv_max3_u32 v{t + 1}, v{t + 1}, v{SW + 4 * i + 1}, v{SW + 4 * i + 3}")
        a(f"v_cmp_ne_u32 vcc, s{TAG}, v{t}\nv_cmp_ne_u32 {sr(ST, 2)}, s{TAG}, v{t + 1}")
        a(f"s_or_b64 vcc, vcc, {sr(ST, 2)}\ns_cmp_eq_u64 vcc, 0\ns_cbranch_scc1 {Lsd}")
        self.spin_tail(Ls)
        a.label(Lsd)
        for i in range(7):
            a(f"v_add_f32 v{SW + 4 * i}, v{SW + 4 * i}, v{SW + 4 * i + 2}")
        a(f"v_add_f32 v{t}, 1.0, v{SW + 8}\nv_cmp_le_u32 vcc, 128, v0\nv_cndmask_b32 v{SW + 8}, v{SW + 8}, v{t}, vcc")
        a(f"v_add_f32 v{SW + 12}, 1.0, v{SW + 12}\nv_add_f32 v{SW + 16}, 1.0, v{SW + 16}")
        a(f"v_subrev_u32 v{t + 1}, 160, v0\nv_add_f32 v{t}, 1.0, v{SW + 20}\nv_cmp_gt_u32 vcc, 80, v{t + 1}\nv_cndmask_b32 v{SW + 20}, v{SW + 20}, v{t}, vcc")
        a(f"v_lshlrev_b32 v{t}, 2, v0\nv_add_u32 v{t + 1}, {L_SA}, v{t}\nv_add_u32 v{t + 2}, {L_OWN}, v{t}")
        for i in range(5):
            a(f"ds_write_b32 v{t + 1}, v{SW + 4 * i} offset:{1024 * i}")
        a(f"ds_write_b32 v{t + 2}, v{SW + 20}")
        Lo = a.newlabel('L_own')
        a(f"s_cmp_lg_u32 s{WV}, 0\ns_cbranch_scc1 {Lo}")
        a(f"ds_write_b32 v{t + 2}, v{SW + 24} offset:1024")
        a(f"s_cmp_lg_u32 s2, 0\ns_cbranch_scc1 {Lo}")
        a(f"v_mov_b32 v{t}, s{TAG}\ns_mov_b64 exec, 1")
        a(f"buffer_store_dword v{t}, off, {srd(S_WS)}, 0 sc1")
        a("s_mov_b64 exec, -1")
        a.label(Lo)
        a.nvm -= 1; a.vm_done = a.nvm
        v.free(SW, 28); v.free(so, 3)
        a.wait_all(vm=False)
        a("s_barrier")
        self.stamp('S0')
        self.maybe_stop('S0')

        trb = v.alloc(3, name='trb'); cb = v.alloc(name='cb'); CS = v.alloc(16, align=4, name='cs')
        ACC = v.alloc(40, align=4, name='acc_kv')
        a(f"v_bfe_u32 v{t}, v{L}, 2, 2\nv_lshl_add_u32 v{t}, v{G}, 2, v{t}\nv_mul_u32_u24 v{t}, 160, v{t}")
        a(f"v_and_b32 v{t + 1}, 3, v{L}\nv_mul_u32_u24 v{t + 1}, 40, v{t + 1}\nv_add_u32 v{trb}, v{t}, v{t + 1}")
        a(f"v_add_u32 v{trb + 1}, 0x10000, v{trb}\nv_add_u32 v{trb + 2}, 0x20000, v{trb}")
        a(f"v_lshlrev_b32 v{cb}, 4, v{G}\nv_add_u32 v{cb}, {L_SA}, v{cb}")
        trbs = [trb, trb + 1, trb + 2]

        def kv_slot(s, p):
            m, wl = s >> 1, 2 * (s & 1) + p
            if m < 3:
                return L_WA + (4 * m + wl) * 5120
            if m < 7:
                return L_XS + wl * 20480 + (m - 3) * 5120
            return L_WA + (4 * (m - 7) + wl) * 5120

        def q_slot(s):
            if s < 16:
                return L_XS + (s & 3) * 20480 + (s >> 2) * 5120
            return L_WA + (s - 16) * 5120

        def trjob(slot, T, acc, s, first):
            rd = []
            for h in range(2):
                b, o = self.ldsoff(trbs, slot + 8 * T + 2560 * h)
                rd.append((2 * h, 2, f"ds_read_b64_tr_b16 {{dst}}, v{b} offset:{o}"))
            c = "0" if first else vr(acc, 4)
            return (rd, f"v_mfma_f32_16x16x32_bf16 {vr(acc, 4)}, {{f}}, {vr(X + 4 * s, 4)}, {c}")
        ctok = {}

        def cread(s):
            a(f"ds_read_b128 {vr(CS, 4)}, v{cb} offset:{2560 + 128 * s}\nds_read_b128 {vr(CS + 4, 4)}, v{cb} offset:{2560 + 128 * s + 64}")
            a(f"ds_read_b128 {vr(CS + 8, 4)}, v{cb} offset:{128 * s}\nds_read_b128 {vr(CS + 12, 4)}, v{cb} offset:{128 * s + 64}")
            ctok[s] = a.dstok()

        def modulate(s, part):
            b = X + 8 * s
            if part == 0:
                a.wait(ds=ctok[s])
                for i in range(0, 8, 2):
                    a(f"v_pk_fma_f32 {vr(b + i, 2)}, {vr(b + i, 2)}, {vr(CS + i, 2)}, {vr(CS + 8 + i, 2)}")
            else:
                for i in range(4):
                    a(f"v_cvt_pk_bf16_f32 v{X + 4 * s + i}, v{b + 2 * i}, v{b + 2 * i + 1}")
        cread(0); modulate(0, 0); modulate(0, 1)

        def kv_segment(s0, s1):
            jobs = []; hooks = {}
            for s in range(s0, s1):
                j0 = len(jobs)
                for p in range(2):
                    for T in range(5):
                        jobs.append(trjob(kv_slot(s, p), T, ACC + 20 * p + 4 * T, s, s == 0))
                if s + 1 < 20:
                    hooks[j0 + 1] = (lambda s=s: cread(s + 1))
                    hooks[j0 + 6] = (lambda s=s: modulate(s + 1, 0))
                    hooks[j0 + 8] = (lambda s=s: modulate(s + 1, 1))
            self.stream(jobs, 0, 8, la=4, hooks=hooks)
        kv_segment(0, 6)
        a("s_barrier")
        for m in range(7, 10):
            w_pair(m)
        kv_segment(6, 14)
        a.wait_all()
        a("s_barrier")
        S_QOFF = S_WOFF
        a(f"s_mul_i32 s{ST}, s{WV}, {32 * 3840}\ns_mul_i32 s{ST + 1}, s{CG}, 160\ns_add_u32 s{S_QOFF}, s{ST}, s{ST + 1}")
        for k in range(4):
            self.dma_slot(WD, S_W, S_QOFF, (f"s{S_XSB}", 5120 * k))
            a(f"s_add_u32 s{S_QOFF}, s{S_QOFF}, {128 * 3840}")
        kv_segment(14, 20)
        a("s_barrier")
        self.dma_slot(WD, S_W, S_QOFF, (f"s{S_WAB}", L_WA))
        v.free(WD, 5); v.free(CS, 16); v.free(cb)
        v.free(X + 80, 80)
        self.stamp('kvgemm')
        self.dump('h', X, 80)
        self.dump('kv', ACC, 40)
        self.maybe_stop('kvgemm')
        wtb = v.alloc(name='wtb')
        a(f"v_and_b32 v{t}, 3, v{L}\nv_mad_u32_u24 v{t}, v{G}, 20, v{t}\nv_mul_u32_u24 v{t}, 48, v{t}\nv_add_u32 v{t}, {L_WT}, v{t}")
        a(f"v_lshrrev_b32 v{t + 1}, 2, v{N}\nv_cmp_eq_u32 vcc, v{t + 1}, v{G}\nv_mov_b32 v{t + 1}, {L_ZERO}\nv_cndmask_b32 v{wtb}, v{t + 1}, v{t}, vcc")
        KP = v.alloc(12, align=4, name='kp'); PA = v.alloc(20, align=4, name='pa')
        EP = v.alloc(20, align=2, name='ep'); EN = v.alloc(20, align=2, name='en')
        self.phi_transform(ACC, KP, PA, wtb)
        self.dump('pk', PA, 20)
        PHK = ACC
        self.softmax_pair(PA, EP, EN, PHK, t)
        VP = KP
        for i in range(10):
            a(f"v_cvt_pk_bf16_f32 v{VP + i}, v{ACC + 20 + 2 * i}, v{ACC + 20 + 2 * i + 1}")
        a(f"v_mov_b32 v{VP + 10}, 0x3f80\nv_mov_b32 v{VP + 11}, 0")
        a(f"s_lshl_b32 s{ST}, s{WV}, 4\nv_lshl_add_u32 v{t}, v{G}, 6, v{N}\nv_add_u32 v{t}, s{ST}, v{t}")
        a(f"v_mul_u32_u24 v{t + 1}, 80, v{t}\nv_mul_u32_u24 v{t}, 48, v{t}")
        for i in range(5):
            a(f"ds_write_b128 v{t + 1}, {vr(PHK + 4 * i, 4)} offset:{L_PK + 16 * i}")
        for i in range(3):
            a(f"ds_write_b128 v{t}, {vr(VP + 4 * i, 4)} offset:{L_V + 16 * i}")
        KO = EN
        a(f"s_mul_i32 s{ST}, s{WV}, 210")
        for Tf in range(3):
            for Td in range(2):
                d = KO + 2 * Tf + Td
                a(f"v_mad_u32_u24 v{t}, v{G}, 21, v{N}\nv_add_u32 v{t}, s{ST}, v{t}\nv_add_u32 v{t}, {84 * Tf + 16 * Td}, v{t}")
                a(f"v_mul_u32_u24 v{t + 1}, 2341, v{t}\nv_lshrrev_b32 v{t + 1}, 16, v{t + 1}\nv_mul_u32_u24 v{t + 1}, 13888, v{t + 1}")
                a(f"v_lshl_add_u32 v{d}, v{t}, 4, v{t + 1}")
                a(f"v_mov_b32 v{t}, {OOB}")
                if Tf == 2:
                    a(f"v_cmp_gt_u32 vcc, 2, v{G}\nv_cndmask_b32 v{d}, v{t}, v{d}, vcc")
                if Td == 1:
                    a(f"v_cmp_gt_u32 vcc, 5, v{N}\nv_cndmask_b32 v{d}, v{t}, v{d}, vcc")
        a(f"v_bfe_u32 v{t}, v{L}, 2, 2\nv_lshl_add_u32 v{t}, v{G}, 2, v{t}\ns_lshl_b32 s{ST}, s{WV}, 6\nv_add_u32 v{t}, s{ST}, v{t}")
        a(f"v_and_b32 v{t + 1}, 3, v{L}\nv_lshlrev_b32 v{t + 1}, 3, v{t + 1}")
        a(f"v_mad_u32_u24 v{t + 2}, v{t}, 48, v{t + 1}\nv_mul_u32_u24 v{t}, 80, v{t}\nv_add_u32 v{t}, v{t}, v{t + 1}")
        a.wait_all()
        a("s_barrier")
        KVA = ACC
        FA = EP
        for s2 in range(2):
            for Tf in range(3):
                for h in range(2):
                    a(f"ds_read_b64_tr_b16 {vr(FA + 4 * Tf + 2 * h, 2)}, v{t} offset:{L_PK + (32 * s2 + 16 * h) * 80 + 32 * Tf}")
            for Td in range(2):
                for h in range(2):
                    a(f"ds_read_b64_tr_b16 {vr(FA + 12 + 4 * Td + 2 * h, 2)}, v{t + 2} offset:{L_V + (32 * s2 + 16 * h) * 48 + 32 * Td}")
            a.wait_all(vm=False)
            for Tf in range(3):
                for Td in range(2):
                    d = vr(KVA + 4 * (2 * Tf + Td), 4)
                    a(f"v_mfma_f32_16x16x32_bf16 {d}, {vr(FA + 4 * Tf, 4)}, {vr(FA + 12 + 4 * Td, 4)}, {d if s2 else '0'}")
            if s2 == 0:
                a("s_nop 7")
        a(f"s_mul_i32 s{ST}, s{CG}, {30 * 14336}\ns_mul_i32 s{ST + 1}, s{RB}, 448\ns_add_u32 s{ST}, s{ST}, s{ST + 1}\ns_add_u32 s{ST}, s{ST}, {KV1}")
        for k in range(6):
            a(f"buffer_store_dwordx4 {vr(KVA + 4 * k, 4)}, v{KO + k}, {srd(S_WS)}, s{ST} offen sc1")
        self.stamp('kvpub')
        self.maybe_stop('kvpub')
        QA = ACC + 24 - 4
        a.wait_all(ds=False) if False else None
        QA = PA
        jobs = []
        for s in range(20):
            for T in range(5):
                jobs.append(trjob(q_slot(s), T, QA + 4 * T, s, s == 0))
        self.stream(jobs, 0, 8, la=5)
        v.free(trb, 3); v.free(X, 80)
        a("s_barrier")
        self.stamp('qgemm')
        self.dump('q', QA, 20)
        Lr = a.newlabel('L_nored')
        R1 = v.alloc(16, align=4, name='r1')
        a(f"s_cmp_ge_u32 s{RB}, 30\ns_cbranch_scc1 {Lr}")
        a(f"v_lshrrev_b32 v{t}, 3, v{L}\nv_min_u32 v{t}, 6, v{t}\ns_mul_i32 s{ST + 2}, s{WV}, 7\nv_add_u32 v{t}, s{ST + 2}, v{t}")
        a(f"v_and_b32 v{t + 1}, 7, v{L}\nv_mul_u32_u24 v{t + 2}, 1792, v{t + 1}\nv_lshl_add_u32 v{t + 2}, v{t}, 4, v{t + 2}")
        a(f"s_mul_i32 s{ST + 2}, s{CG}, 30\ns_add_u32 s{ST + 2}, s{ST + 2}, s{RB}\ns_mul_i32 s{ST + 2}, s{ST + 2}, 14336\ns_add_u32 s{ST + 2}, s{ST + 2}, {KV1}")
        self.poll_poison([f"buffer_load_dwordx4 {vr(R1 + 4 * i, 4)}, v{t + 2}, {srd(S_WS)}, s{ST + 2} offen offset:{448 * i} sc1" for i in range(4)],
                         range(R1, R1 + 16), t + 3)
        for i in range(0, 4, 2):
            a(f"v_pk_add_f32 {vr(R1 + i, 2)}, {vr(R1 + i, 2)}, {vr(R1 + 4 + i, 2)}\nv_pk_add_f32 {vr(R1 + 8 + i, 2)}, {vr(R1 + 8 + i, 2)}, {vr(R1 + 12 + i, 2)}")
        for i in range(0, 4, 2):
            a(f"v_pk_add_f32 {vr(R1 + i, 2)}, {vr(R1 + i, 2)}, {vr(R1 + 8 + i, 2)}")
        for ctl in ("quad_perm:[1,0,3,2]", "quad_perm:[2,3,0,1]", "row_half_mirror"):
            for i in range(4):
                a(f"v_add_f32_dpp v{R1 + i}, v{R1 + i}, v{R1 + i} {ctl} row_mask:0xf bank_mask:0xf")
        a(f"v_cvt_pk_bf16_f32 v{R1 + 4}, v{R1}, v{R1 + 1}\nv_cvt_pk_bf16_f32 v{R1 + 5}, v{R1 + 2}, v{R1 + 3}")
        a(f"v_lshlrev_b32 v{t}, 3, v{t}\nv_mov_b32 v{t + 2}, {OOB}\nv_cmp_eq_u32 vcc, 0, v{t + 1}\nv_cndmask_b32 v{t}, v{t + 2}, v{t}, vcc")
        a(f"v_cmp_gt_u32 vcc, 56, v{L}\nv_cndmask_b32 v{t}, v{t + 2}, v{t}, vcc")
        a(f"s_lshl_b32 s{ST}, s{CG}, 13\ns_mul_i32 s{ST + 1}, s{RB}, 224\ns_add_u32 s{ST}, s{ST}, s{ST + 1}\ns_add_u32 s{ST}, s{ST}, {KV2}")
        a(f"buffer_store_dwordx2 {vr(R1 + 4, 2)}, v{t}, {srd(S_WS)}, s{ST} offen sc1")
        a.label(Lr)
        a.vm_done = 0
        self.stamp('red1')
        OD = v.alloc(5, name='od')
        self.seg160_addr(OD, 1280, t)
        a(f"s_mul_i32 s{ST + 2}, s{WV}, {160 * 1280}\ns_mul_i32 s{ST + 1}, s{CG}, 160\ns_add_u32 s{ST + 2}, s{ST + 2}, s{ST + 1}")
        a(f"s_mul_i32 s{ST + 3}, s{WV}, 25600")
        for k in range(5):
            self.dma_slot(OD, S_WO, ST + 2, (f"s{ST + 3}", 5120 * k))
            a(f"s_add_u32 s{ST + 2}, s{ST + 2}, {32 * 1280}")
        PQ = ACC + 20
        PB = ACC
        self.phi_transform(QA, KP, PB, wtb)
        self.dump('pq', PB, 20)
        self.softmax_pair(PB, EP, EN, PQ, t)
        v.free(wtb)
        self.stamp('phiq')
        GA = EN
        for i in range(4):
            if i < 3:
                a(f"v_add_u32 v{t}, {256 * i}, v0")
            else:
                a(f"v_min_u32 v{t}, 71, v0\nv_add_u32 v{t}, 768, v{t}")
                a(f"v_lshlrev_b32 v{GA + 5}, 3, v{t}")
            a(f"v_mul_u32_u24 v{t + 1}, 19973, v{t}\nv_lshrrev_b32 v{t + 1}, 22, v{t + 1}")
            a(f"v_mul_u32_u24 v{t + 2}, 210, v{t + 1}\nv_sub_u32 v{t}, v{t}, v{t + 2}")
            a(f"v_mul_u32_u24 v{t + 2}, 3121, v{t}\nv_lshrrev_b32 v{t + 2}, 16, v{t + 2}")
            a(f"v_mul_u32_u24 v{t + 3}, 21, v{t + 2}\nv_sub_u32 v{t}, v{t}, v{t + 3}")
            a(f"v_mad_u32_u24 v{t}, v{t + 1}, 21, v{t}\nv_mul_u32_u24 v{t}, 80, v{t}")
            a(f"v_lshl_add_u32 v{t}, v{t + 2}, 3, v{t}\nv_add_u32 v{GA + i}, {L_KT}, v{t}")
        a(f"v_lshlrev_b32 v{GA + 4}, 3, v0")
        a(f"s_lshl_b32 s{ST + 2}, s{CG}, 13\ns_add_u32 s{ST + 2}, s{ST + 2}, {KV2}\ns_add_u32 s{ST + 3}, s{ST + 2}, 4096")
        lds_ = [f"buffer_load_dwordx2 {vr(R1, 2)}, v{GA + 4}, {srd(S_WS)}, s{ST + 2} offen sc1",
                f"buffer_load_dwordx2 {vr(R1 + 2, 2)}, v{GA + 4}, {srd(S_WS)}, s{ST + 2} offen offset:2048 sc1",
                f"buffer_load_dwordx2 {vr(R1 + 4, 2)}, v{GA + 4}, {srd(S_WS)}, s{ST + 3} offen sc1",
                f"buffer_load_dwordx2 {vr(R1 + 6, 2)}, v{GA + 5}, {srd(S_WS)}, s{ST + 2} offen sc1"]
        self.poll_poison(lds_, range(R1, R1 + 8), t)
        for i in range(4):
            a(f"ds_write_b64 v{GA + i}, {vr(R1 + 2 * i, 2)}")
        ktb = t + 2
        a(f"v_and_b32 v{t}, 3, v{L}\nv_mad_u32_u24 v{t + 1}, v{G}, 21, v{t}\nv_mul_u32_u24 v{t + 1}, 80, v{t + 1}\nv_add_u32 v{t + 1}, {L_KT}, v{t + 1}")
        a(f"v_lshrrev_b32 v{t + 3}, 2, v{N}\nv_cmp_eq_u32 vcc, v{t + 3}, v{G}\nv_mov_b32 v{t + 4}, {L_ZERO}\nv_cndmask_b32 v{ktb}, v{t + 4}, v{t + 1}, vcc")
        a(f"v_add_u32 v{t + 1}, 1600, v{t + 1}\nv_lshlrev_b32 v{t + 3}, 2, v{G}\nv_cmp_eq_u32 vcc, v{t + 3}, v{N}\nv_cndmask_b32 v{ktb + 1}, v{t + 4}, v{t + 1}, vcc")
        a.wait_all(vm=False)
        a("s_barrier")
        self.stamp('S1')
        v.free(R1, 16)
        OA = v.alloc(24, align=4, name='oa')
        jobs = []
        for s in range(5):
            for T in (5, 0, 1, 2, 3, 4):
                if T < 5:
                    rd = [(0, 4, f"ds_read_b128 {{dst}}, v{ktb} offset:{320 * T + 16 * s}")]
                else:
                    rd = [(0, 4, f"ds_read_b128 {{dst}}, v{ktb + 1} offset:{16 * s}")]
                d = vr(OA + 4 * T, 4)
                jobs.append((rd, f"v_mfma_f32_16x16x32_bf16 {d}, {{f}}, {vr(PQ + 4 * s, 4)}, {d if s else '0'}"))
        self.stream(jobs, 0, 8, la=6)
        a(f"v_add_f32 v{t}, 0x358637bd, v{OA + 20}\nv_rcp_f32 v{t}, v{t}")
        for i in range(0, 20, 2):
            a(f"v_pk_mul_f32 {vr(OA + i, 2)}, {vr(OA + i, 2)}, {vr(t, 2)} op_sel_hi:[1,0]")
        OP = KP
        for i in range(10):
            a(f"v_cvt_pk_bf16_f32 v{OP + i}, v{OA + 2 * i}, v{OA + 2 * i + 1}")
        self.act_store_80(OBUF, OP, vl16, vl8)
        vone = v.alloc(name='one')
        a(f"v_mov_b32 v{vone}, 1")
        a.wait_all(ds=False)
        self.signal(S_CNT, vone)
        self.stamp('opub')
        v.free(OA, 24); v.free(ACC, 40); v.free(PA, 20); v.free(EP, 20); v.free(EN, 20); v.free(KP, 12)
        self.maybe_stop('opub')

        self.wsp_setup(); self.wsp_rebase(102400)
        self.wsp_rounds(3)
        RING = v.alloc(32, align=4, name='ring')
        F = v.alloc(80, align=4, name='F'); X1 = v.alloc(20, align=4, name='x1', hi=False)
        tb = v.alloc(2, name='tb')
        a(f"v_bfe_u32 v{t}, v{L}, 2, 2\nv_mad_u32_u24 v{t}, v{G}, 20, v{t}\nv_mul_u32_u24 v{t}, 160, v{t}")
        a(f"v_and_b32 v{t + 1}, 3, v{L}\nv_lshl_add_u32 v{tb}, v{t + 1}, 3, v{t}\nv_add_u32 v{tb + 1}, 0x10000, v{tb}")
        self.poll_counter(S_CNT, 8, t)
        self.stamp('S2')
        ftok = self.act_loads_640(OBUF, F, vl16, vl8)

        def rows_o(ks):
            m, k = divmod(ks, 5)
            if k < 4:
                r0 = 80 * (2 * m + (k >> 1)) + 8 * (k & 1)
                return r0, r0 + 4
            return 160 * m + 16, 160 * m + 96

        def gemm640(rows, nT, addr, acc, transposed=True, la=5):
            jobs = []; hooks = {}
            for ks in range(20):
                hooks[len(jobs)] = (lambda ks=ks: a.wait(vm=ftok[ks]))
                for T in range(nT):
                    rd = []
                    for h in range(2):
                        b, o = addr(rows(ks)[h], T)
                        rd.append((2 * h, 2, f"ds_read_b64_tr_b16 {{dst}}, v{b} offset:{o}"))
                    d = vr(acc + 4 * T, 4); act = vr(F + 4 * ks, 4)
                    ops = f"{{f}}, {act}" if transposed else f"{act}, {{f}}"
                    jobs.append((rd, f"v_mfma_f32_16x16x32_bf16 {d}, {ops}, {d if ks else '0'}"))
            self.stream(jobs, RING, 8, la=la, hooks=hooks, ringk='v')
        gemm640(rows_o, 5, lambda r, T: self.ldsoff([tb, tb + 1], r * 160 + 32 * T), X1)
        a("s_barrier")
        self.stamp('P2')
        ob = v.alloc(name='ob'); M = v.alloc(40, align=4, name='M')
        a(f"v_lshlrev_b32 v{ob}, 4, v{G}\nv_add_u32 v{ob}, {L_OWN}, v{ob}")
        for T in range(5):
            a(f"ds_read_b128 {vr(M + 4 * T, 4)}, v{ob} offset:{64 * T}")
        for T in range(5):
            b = M + 20 + 4 * T
            a(f"v_lshlrev_b32 v{b}, 16, v{XR + 2 * T}\nv_and_b32 v{b + 1}, 0xffff0000, v{XR + 2 * T}")
            a(f"v_lshlrev_b32 v{b + 2}, 16, v{XR + 2 * T + 1}\nv_and_b32 v{b + 3}, 0xffff0000, v{XR + 2 * T + 1}")
        a.wait_all(vm=False)
        for i in range(0, 20, 2):
            a(f"v_pk_fma_f32 {vr(X1 + i, 2)}, {vr(X1 + i, 2)}, {vr(M + i, 2)}, {vr(M + 20 + i, 2)}")
        v.free(XR, 10)
        for T in range(5):
            a(f"ds_read_b128 {vr(M + 4 * T, 4)}, v{ob} offset:{640 + 64 * T}")
        for T in range(5):
            a(f"ds_read_b128 {vr(M + 20 + 4 * T, 4)}, v{ob} offset:{320 + 64 * T}")
        a(f"v_pk_add_f32 {vr(t, 2)}, {vr(X1, 2)}, {vr(X1 + 2, 2)}\nv_pk_mul_f32 {vr(t + 2, 2)}, {vr(X1, 2)}, {vr(X1, 2)}")
        a(f"v_pk_fma_f32 {vr(t + 2, 2)}, {vr(X1 + 2, 2)}, {vr(X1 + 2, 2)}, {vr(t + 2, 2)}")
        for i in range(4, 20, 2):
            a(f"v_pk_add_f32 {vr(t, 2)}, {vr(t, 2)}, {vr(X1 + i, 2)}\nv_pk_fma_f32 {vr(t + 2, 2)}, {vr(X1 + i, 2)}, {vr(X1 + i, 2)}, {vr(t + 2, 2)}")
        a(f"v_add_f32 v{t}, v{t}, v{t + 1}\nv_add_f32 v{t + 1}, v{t + 2}, v{t + 3}")
        a(f"v_permlane32_swap_b32 v{t}, v{t + 1}\nv_add_f32 v{t}, v{t}, v{t + 1}")
        a(f"v_mov_b32 v{t + 1}, v{t}\nv_permlane16_swap_b32 v{t}, v{t + 1}\nv_add_f32 v{t}, v{t}, v{t + 1}")
        a(f"v_lshlrev_b32 v{t + 1}, 2, v{N}\nv_lshl_add_u32 v{t + 2}, v{G}, 5, v{t + 1}\nv_mov_b32 v{t + 3}, {OOB}")
        a(f"v_and_b32 v{t + 4}, 1, v{G}\nv_cmp_eq_u32 vcc, 0, v{t + 4}\nv_cndmask_b32 v{t + 2}, v{t + 3}, v{t + 2}, vcc")
        S_STO = S_KA + 3
        a(f"s_lshl_b32 s{S_STO}, s{RB}, 2\ns_add_u32 s{S_STO}, s{S_STO}, s{WV}\ns_lshl_b32 s{S_STO}, s{S_STO}, 10")
        a(f"s_lshl_b32 s{ST}, s{CG}, 7\ns_add_u32 s{ST}, s{ST}, s{S_STO}\ns_add_u32 s{ST}, s{ST}, {STA}")
        a(f"buffer_store_dword v{t}, v{t + 2}, {srd(S_WS)}, s{ST} offen sc1")
        ID = v.alloc(3, name='id')
        for i in range(3):
            a(f"v_add_u32 v{t + 2}, {64 * i}, v{L}\nv_mul_u32_u24 v{t + 3}, 5462, v{t + 2}\nv_lshrrev_b32 v{t + 3}, 16, v{t + 3}")
            a(f"v_mul_u32_u24 v{t + 4}, 12, v{t + 3}\nv_sub_u32 v{t + 2}, v{t + 2}, v{t + 4}")
            a(f"v_bfe_u32 v{t + 4}, v{t + 3}, 2, 1\nv_lshlrev_b32 v{t + 4}, 1, v{t + 4}\nv_sub_u32 v{t + 2}, v{t + 2}, v{t + 4}")
            a(f"v_add_u32 v{t + 4}, 12, v{t + 2}\nv_min_u32 v{t + 2}, v{t + 2}, v{t + 4}")
            a(f"v_mul_u32_u24 v{t + 3}, 3072, v{t + 3}\nv_lshl_add_u32 v{ID + i}, v{t + 2}, 4, v{t + 3}")
            if i:
                a(f"v_subrev_u32 v{ID + i}, {1024 * i}, v{ID + i}")

        def win_dma(half):
            a(f"s_mul_i32 s{ST + 2}, s{WV}, {160 * 3072}\ns_mul_i32 s{ST + 3}, s{CG}, 192\ns_add_u32 s{ST + 2}, s{ST + 2}, s{ST + 3}")
            if half:
                a(f"s_add_u32 s{ST + 2}, s{ST + 2}, 1536")
            a(f"s_mul_i32 s{ST + 3}, s{WV}, 30720")
            for b in range(10):
                a(f"s_add_u32 m0, s{ST + 3}, {3072 * b}")
                for i in range(3):
                    a(f"buffer_load_dwordx4 v{ID + i}, {srd(S_WIN)}, s{ST + 2} offen offset:{1024 * i} lds")
                a(f"s_add_u32 s{ST + 2}, s{ST + 2}, {16 * 3072}")
        win_dma(1)
        a(f"v_lshl_add_u32 v{t + 1}, v{G}, 8, v{t + 1}\ns_add_u32 s{ST + 2}, s{S_STO}, {STA}")
        self.poll_poison([f"buffer_load_dword v{RING + i}, v{t + 1}, {srd(S_WS)}, s{ST + 2} offen offset:{64 * i} sc1" for i in range(4)],
                         range(RING, RING + 4), t)
        a(f"v_add_f32 v{RING}, v{RING}, v{RING + 2}\nv_add_f32 v{RING + 1}, v{RING + 1}, v{RING + 3}")
        self.allred_g(RING, t); self.allred_g(RING + 1, t + 1)
        self.mean_rstd(RING, RING + 1, 640, t, t + 1)
        self.stamp('S3a')
        HT = F
        a.wait_all(vm=False)
        for i in range(0, 20, 2):
            a(f"v_pk_fma_f32 {vr(HT + i, 2)}, {vr(X1 + i, 2)}, {vr(t, 2)}, {vr(t, 2)} op_sel:[0,0,1] op_sel_hi:[1,0,1]")
        for i in range(0, 20, 2):
            a(f"v_pk_fma_f32 {vr(HT + i, 2)}, {vr(HT + i, 2)}, {vr(M + i, 2)}, {vr(M + 20 + i, 2)}")
        for i in range(10):
            a(f"v_cvt_pk_bf16_f32 v{HT + 20 + i}, v{HT + 2 * i}, v{HT + 2 * i + 1}")
        self.act_store_80(H2B, HT + 20, vl16, vl8)
        a.wait_all(ds=False)
        self.signal(S_CNT, vone)
        v.free(M, 40)
        self.stamp('h2pub')
        self.dump('x1', X1, 20)
        self.maybe_stop('h2pub')

        a("s_barrier")
        self.wsp_rebase(122880)
        self.wsp_rounds(2)
        tb5 = v.alloc(2, name='tb5')
        a(f"v_bfe_u32 v{t}, v{L}, 2, 2\nv_lshl_add_u32 v{t}, v{G}, 2, v{t}\nv_mul_u32_u24 v{t}, 192, v{t}")
        a(f"v_and_b32 v{t + 1}, 3, v{L}\nv_lshl_add_u32 v{t}, v{t + 1}, 3, v{t}\nv_and_b32 v{t + 1}, 1, v{G}")
        a(f"v_lshl_add_u32 v{tb}, v{t + 1}, 5, v{t}\nv_add_u32 v{tb + 1}, 0x10000, v{tb}")
        a(f"v_xor_b32 v{t + 1}, 1, v{t + 1}\nv_mad_u32_u24 v{tb5}, v{t + 1}, 160, v{t}".replace("v_mad_u32_u24 v%d, v%d, 160, v%d" % (tb5, t + 1, t),
          "v_mul_u32_u24 v%d, 160, v%d\nv_add_u32 v%d, v%d, v%d" % (t + 1, t + 1, tb5, t + 1, t)))
        a(f"v_add_u32 v{tb5 + 1}, 0x10000, v{tb5}")
        self.poll_counter(S_CNT, 16, t)
        self.stamp('S3')
        ftok = self.act_loads_640(H2B, F, vl16, vl8)

        def rows_h(ks):
            m, k = divmod(ks, 5)
            if k < 4:
                r0 = 80 * (2 * m + (k >> 1)) + 32 * (k & 1)
                return r0, r0 + 16
            return 160 * m + 64, 160 * m + 144

        def win_addr(r, T):
            if T < 5:
                return self.ldsoff([tb, tb + 1], r * 192 + 32 * T)
            return self.ldsoff([tb5, tb5 + 1], r * 192)
        Z = v.alloc(24, align=4, name='z', hi=False); ZT = v.alloc(24, align=4, name='zt')
        gemm640(rows_h, 6, win_addr, Z, transposed=False)
        a("s_barrier")
        self.stamp('P3a')
        win_dma(0)
        self.gelu(Z, 24, ZT, t)
        SS = RING
        for i in range(0, 4, 2):
            a(f"v_pk_add_f32 {vr(SS + i, 2)}, {vr(Z + i, 2)}, {vr(Z + 4 + i, 2)}\nv_pk_mul_f32 {vr(SS + 4 + i, 2)}, {vr(Z + i, 2)}, {vr(Z + i, 2)}")
        for T in range(1, 6):
            for i in range(0, 4, 2):
                if T > 1:
                    a(f"v_pk_add_f32 {vr(SS + i, 2)}, {vr(SS + i, 2)}, {vr(Z + 4 * T + i, 2)}")
                a(f"v_pk_fma_f32 {vr(SS + 4 + i, 2)}, {vr(Z + 4 * T + i, 2)}, {vr(Z + 4 * T + i, 2)}, {vr(SS + 4 + i, 2)}")
        for ctl in ("quad_perm:[1,0,3,2]", "quad_perm:[2,3,0,1]", "row_half_mirror", "row_mirror"):
            for i in range(8):
                a(f"v_add_f32_dpp v{SS + i}, v{SS + i}, v{SS + i} {ctl} row_mask:0xf bank_mask:0xf")
        a(f"v_lshlrev_b32 v{t}, 4, v{G}\nv_mov_b32 v{t + 1}, {OOB}\nv_cmp_eq_u32 vcc, 0, v{N}\nv_cndmask_b32 v{t + 1}, v{t + 1}, v{t}, vcc")
        a(f"s_lshl_b32 s{ST}, s{CG}, 7\ns_add_u32 s{ST}, s{ST}, s{S_STO}\ns_add_u32 s{ST}, s{ST}, {STB}")
        a(f"buffer_store_dwordx4 {vr(SS, 4)}, v{t + 1}, {srd(S_WS)}, s{ST} offen sc1")
        a(f"buffer_store_dwordx4 {vr(SS + 4, 4)}, v{t + 1}, {srd(S_WS)}, s{ST} offen offset:64 sc1")
        self.stamp('gelu2')
        self.wsp_rounds(1)
        a(f"v_and_b32 v{t + 1}, 7, v{N}\nv_lshl_add_u32 v{t}, v{t + 1}, 7, v{t}\nv_lshrrev_b32 v{t + 1}, 3, v{N}\nv_lshl_add_u32 v{t}, v{t + 1}, 6, v{t}")
        a(f"s_add_u32 s{ST + 2}, s{S_STO}, {STB}")
        Q4 = RING + 8
        self.poll_poison([f"buffer_load_dwordx4 {vr(Q4, 4)}, v{t}, {srd(S_WS)}, s{ST + 2} offen sc1"], range(Q4, Q4 + 4), t + 1)
        for ctl in ("quad_perm:[1,0,3,2]", "quad_perm:[2,3,0,1]", "row_half_mirror"):
            for i in range(4):
                a(f"v_add_f32_dpp v{Q4 + i}, v{Q4 + i}, v{Q4 + i} {ctl} row_mask:0xf bank_mask:0xf")
        for i in range(4):
            a(f"v_mov_b32_dpp v{Q4 + 4 + i}, v{Q4 + i} row_ror:8 row_mask:0xf bank_mask:0xf")
        a(f"v_cmp_gt_u32 vcc, 8, v{N}")
        for i in range(4):
            a(f"v_cndmask_b32 v{SS + i}, v{Q4 + 4 + i}, v{Q4 + i}, vcc\nv_cndmask_b32 v{SS + 4 + i}, v{Q4 + i}, v{Q4 + 4 + i}, vcc")
        RS, NB = Q4, Q4 + 4
        for i in range(4):
            self.mean_rstd(SS + i, SS + 4 + i, 768, RS + i, NB + i)
        self.stamp('S4')
        for T in range(6):
            for i in range(0, 4, 2):
                a(f"v_pk_fma_f32 {vr(Z + 4 * T + i, 2)}, {vr(Z + 4 * T + i, 2)}, {vr(RS + i, 2)}, {vr(NB + i, 2)}")
        for T in range(6):
            a(f"v_cvt_pk_bf16_f32 v{ZT + 2 * T}, v{Z + 4 * T}, v{Z + 4 * T + 1}\nv_cvt_pk_bf16_f32 v{ZT + 2 * T + 1}, v{Z + 4 * T + 2}, v{Z + 4 * T + 3}")
        for p in range(3):
            a(f"v_permlane32_swap_b32 v{ZT + 4 * p}, v{ZT + 4 * p + 2}\nv_permlane32_swap_b32 v{ZT + 4 * p + 1}, v{ZT + 4 * p + 3}")
        a(f"v_and_b32 v{t}, 31, v{L}\nv_lshlrev_b32 v{t}, 4, v{t}\nv_lshrrev_b32 v{t + 1}, 5, v{L}\nv_lshl_add_u32 v{t}, v{t + 1}, 10, v{t}")
        a(f"s_lshl_b32 s{ST}, s{CG}, 6\ns_lshl_b32 s{ST + 1}, s{RB}, 1\ns_add_u32 s{ST}, s{ST}, s{ST + 1}\ns_lshr_b32 s{ST + 1}, s{WV}, 1\ns_add_u32 s{ST}, s{ST}, s{ST + 1}")
        a(f"s_mul_i32 s{ST}, s{ST}, 6144\ns_and_b32 s{ST + 1}, s{WV}, 1\ns_lshl_b32 s{ST + 1}, s{ST + 1}, 9\ns_add_u32 s{ST}, s{ST}, s{ST + 1}\ns_add_u32 s{ST}, s{ST}, {Z2B}")
        a(f"s_add_u32 s{ST + 1}, s{ST}, 4096")
        a(f"buffer_store_dwordx4 {vr(ZT, 4)}, v{t}, {srd(S_WS)}, s{ST} offen sc1")
        a(f"buffer_store_dwordx4 {vr(ZT + 4, 4)}, v{t}, {srd(S_WS)}, s{ST} offen offset:2048 sc1")
        a(f"buffer_store_dwordx4 {vr(ZT + 8, 4)}, v{t}, {srd(S_WS)}, s{ST + 1} offen sc1")
        a(f"s_lshl_b32 s{ST + 2}, s{CG}, 2\ns_lshr_b32 s{ST + 3}, s{RB}, 3\ns_add_u32 s{ST + 2}, s{ST + 2}, s{ST + 3}\ns_lshl_b32 s{ST + 2}, s{ST + 2}, 7\ns_add_u32 s{ST + 2}, s{ST + 2}, {CNT5}")
        a.wait_all(ds=False)
        self.signal(ST + 2, vone)
        self.stamp('z2pub')
        self.maybe_stop('z2pub')
        a("s_barrier")
        gemm640(rows_h, 6, win_addr, Z, transposed=True)
        self.gelu(Z, 24, ZT, t)
        v.free(ZT, 24); v.free(F, 80); v.free(RING, 32); v.free(tb5, 2); v.free(ID, 3)
        self.stamp('P3b')
        self.dump('z1', Z, 24)
        self.wsp_rounds(2)
        v.free(self.wspd, 2); v.free(self.wspr, 4)
        self.dump('wsp', 0, 256, agpr=True)

        NZ = 19
        A4 = v.alloc(96, align=4, name='acc4'); ZR = v.alloc(4 * NZ, align=4, name='zring')
        self.poll_counter(S_CNT5W, 32, t)
        self.stamp('S5')
        a(f"s_lshl_b32 s{ST}, s{CG}, 2\ns_add_u32 s{ST}, s{ST}, s{WV}\ns_mul_i32 s{ST}, s{ST}, {16 * 6144}\ns_add_u32 s{ST}, s{ST}, {Z2B}")
        zt = {}

        def zload(j):
            a(f"buffer_load_dwordx4 {vr(ZR + 4 * (j % NZ), 4)}, v{vl16}, {srd(S_WS)}, s{ST} offen offset:{1024 * (j & 3)} sc1")
            zt[j] = a.vmtok()
            if (j & 3) == 3:
                a(f"s_add_u32 s{ST}, s{ST}, 4096")
        for j in range(NZ - 1):
            zload(j)
        for j in range(96):
            s, T = divmod(j, 6)
            a.wait(vm=zt[j])
            for tt in range(4):
                d = vr(A4 + 4 * (4 * T + tt), 4)
                a(f"v_mfma_f32_16x16x32_bf16 {d}, {vr(ZR + 4 * (j % NZ), 4)}, {ar((tt * 16 + s) * 4, 4)}, {d if s else '0'}")
                if tt == 0 and j + NZ - 1 < 96:
                    zload(j + NZ - 1)
        v.free(ZR, 4 * NZ)
        self.stamp('P4')
        a("s_barrier")
        a(f"s_mul_i32 s{ST + 2}, s{WV}, {192 * 1280}\ns_mul_i32 s{ST + 1}, s{CG}, 160\ns_add_u32 s{ST + 2}, s{ST + 2}, s{ST + 1}")
        a(f"s_mul_i32 s{ST + 3}, s{WV}, 30720")
        for k in range(6):
            self.dma_slot(OD, S_WOUT, ST + 2, (f"s{ST + 3}", 5120 * k))
            a(f"s_add_u32 s{ST + 2}, s{ST + 2}, {32 * 1280}")
        v.free(OD, 5)
        ra = v.alloc(4, name='ra'); RT = v.alloc(36, align=4, name='rt')
        for k in range(1, 4):
            a(f"s_add_u32 s{ST}, s{WV}, {k}\ns_and_b32 s{ST}, s{ST}, 3\ns_mul_i32 s{ST}, s{ST}, 9216\ns_add_u32 s{ST}, s{ST}, {L_RED + 3072 * (k - 1)}")
            a(f"v_add_u32 v{ra + k}, s{ST}, v{vl16}")
        a(f"s_mul_i32 s{ST}, s{WV}, 9216\ns_add_u32 s{ST}, s{ST}, {L_RED}\nv_add_u32 v{ra}, s{ST}, v{vl16}")
        for rnd in range(2):
            if rnd:
                a("s_barrier")
            for k in range(1, 4):
                for Tp in range(3):
                    a(f"ds_write_b128 v{ra + k}, {vr(A4 + 4 * (4 * (3 * rnd + Tp) + k), 4)} offset:{1024 * Tp}")
            a.wait_all(vm=False)
            a("s_barrier")
            for k in range(3):
                for Tp in range(3):
                    a(f"ds_read_b128 {vr(RT + 4 * (3 * k + Tp), 4)}, v{ra} offset:{3072 * k + 1024 * Tp}")
            a.wait_all(vm=False)
            for Tp in range(3):
                d = A4 + 16 * (3 * rnd + Tp)
                for i in range(0, 4, 2):
                    a(f"v_pk_add_f32 {vr(RT + 4 * Tp + i, 2)}, {vr(RT + 4 * Tp + i, 2)}, {vr(RT + 12 + 4 * Tp + i, 2)}")
                    a(f"v_pk_add_f32 {vr(d + i, 2)}, {vr(d + i, 2)}, {vr(RT + 24 + 4 * Tp + i, 2)}")
                for i in range(0, 4, 2):
                    a(f"v_pk_add_f32 {vr(d + i, 2)}, {vr(d + i, 2)}, {vr(RT + 4 * Tp + i, 2)}")
        a(f"v_mov_b32 v{t}, v{self.vb}")
        for T in range(6):
            d = A4 + 16 * T
            for i in range(0, 4, 2):
                a(f"v_pk_add_f32 {vr(d + i, 2)}, {vr(d + i, 2)}, {vr(t, 2)} op_sel_hi:[1,0]")
            for i in range(0, 4, 2):
                a(f"v_pk_mul_f32 {vr(d + i, 2)}, {vr(d + i, 2)}, {vr(Z + 4 * T + i, 2)}")
            a(f"v_cvt_pk_bf16_f32 v{RT + 2 * T}, v{d}, v{d + 1}\nv_cvt_pk_bf16_f32 v{RT + 2 * T + 1}, v{d + 2}, v{d + 3}")
        S_UB = S_KA + 4
        a(f"s_lshl_b32 s{S_UB}, s{RB}, 2\ns_add_u32 s{S_UB}, s{S_UB}, s{WV}\ns_mul_i32 s{S_UB}, s{S_UB}, 24576\ns_add_u32 s{S_UB}, s{S_UB}, {UBUF}")
        a(f"s_mul_i32 s{ST}, s{CG}, 3072\ns_add_u32 s{ST}, s{ST}, s{S_UB}")
        for p in range(3):
            a(f"buffer_store_dwordx4 {vr(RT + 4 * p, 4)}, v{vl16}, {srd(S_WS)}, s{ST} offen offset:{1024 * p} sc1")
        a.wait_all(ds=False)
        self.signal(S_CNT, vone)
        v.free(ra, 4); v.free(RT, 36); v.free(A4, 96); v.free(Z, 24); v.free(self.vb)
        self.stamp('upub')
        self.maybe_stop('upub')

        a("s_barrier")
        U = v.alloc(96, align=4, name='U'); RING = v.alloc(32, align=4, name='ring'); A5 = v.alloc(20, align=4, name='a5')
        GB = v.alloc(20, align=4, name='gb')
        a(f"v_bfe_u32 v{t}, v{L}, 2, 2\nv_lshl_add_u32 v{t}, v{G}, 2, v{t}\nv_mul_u32_u24 v{t}, 160, v{t}")
        a(f"v_and_b32 v{t + 1}, 3, v{L}\nv_lshl_add_u32 v{tb}, v{t + 1}, 3, v{t}\nv_add_u32 v{tb + 1}, 0x10000, v{tb}")
        for T in range(5):
            a(f"ds_read_b128 {vr(GB + 4 * T, 4)}, v{ob} offset:{960 + 64 * T}")
        a.wait_all(vm=False)
        self.poll_counter(S_CNT, 24, t)
        self.stamp('S6')
        utok = []
        for ks in range(24):
            a(f"buffer_load_dwordx4 {vr(U + 4 * ks, 4)}, v{vl16}, {srd(S_WS)}, s{S_UB} offen offset:{1024 * (ks & 3)} sc1")
            utok.append(a.vmtok())
            if (ks & 3) == 3:
                a(f"s_add_u32 s{S_UB}, s{S_UB}, 4096")
        jobs = []; hooks = {}
        for ks in range(24):
            hooks[len(jobs)] = (lambda ks=ks: a.wait(vm=utok[ks]))
            for T in range(5):
                rd = []
                for h in range(2):
                    b, o = self.ldsoff([tb, tb + 1], (32 * ks + 16 * h) * 160 + 32 * T)
                    rd.append((2 * h, 2, f"ds_read_b64_tr_b16 {{dst}}, v{b} offset:{o}"))
                d = vr(A5 + 4 * T, 4)
                jobs.append((rd, f"v_mfma_f32_16x16x32_bf16 {d}, {{f}}, {vr(U + 4 * ks, 4)}, {d if ks else '0'}"))
        self.stream(jobs, RING, 8, la=5, hooks=hooks, ringk='v')
        a(f"v_and_b32 v{t}, 1, v{G}\nv_lshlrev_b32 v{t}, 5, v{t}\nv_lshrrev_b32 v{t + 1}, 1, v{G}\nv_lshl_add_u32 v{t}, v{t + 1}, 4, v{t}")
        a(f"v_mul_u32_u24 v{t + 1}, 1280, v{N}\nv_add_u32 v{t}, v{t}, v{t + 1}\nv_lshl_add_u32 v{t + 1}, v{G}, 3, v{t + 1}")
        a(f"s_lshl_b32 s{ST}, s{RB}, 2\ns_add_u32 s{ST}, s{ST}, s{WV}\ns_mul_i32 s{ST}, s{ST}, 20480\ns_mul_i32 s{ST + 1}, s{CG}, 160\ns_add_u32 s{ST}, s{ST}, s{ST + 1}")
        for i in range(0, 20, 2):
            a(f"v_pk_fma_f32 {vr(A5 + i, 2)}, {vr(A5 + i, 2)}, {vr(GB + i, 2)}, {vr(X1 + i, 2)}")
        for i in range(10):
            a(f"v_cvt_pk_bf16_f32 v{RING + i}, v{A5 + 2 * i}, v{A5 + 2 * i + 1}")
        for p in range(2):
            a(f"v_permlane16_swap_b32 v{RING + 4 * p}, v{RING + 4 * p + 2}\nv_permlane16_swap_b32 v{RING + 4 * p + 1}, v{RING + 4 * p + 3}")
        a(f"buffer_store_dwordx4 {vr(RING, 4)}, v{t}, {srd(S_OUT)}, s{ST} offen")
        a(f"buffer_store_dwordx4 {vr(RING + 4, 4)}, v{t}, {srd(S_OUT)}, s{ST} offen offset:64")
        a(f"buffer_store_dwordx2 {vr(RING + 8, 2)}, v{t + 1}, {srd(S_OUT)}, s{ST} offen offset:128")
        self.stamp('end')


if __name__ == '__main__':
    import argparse, json
    p = argparse.ArgumentParser()
    p.add_argument('-o', default='k.s')
    p.add_argument('--stop'); p.add_argument('--stamps', nargs='?', const='rt', default=None); p.add_argument('--dumps', default='')
    p.add_argument('--mapping', default='B'); p.add_argument('--dbgout', type=int)
    args = p.parse_args()
    g = Gen(stop=args.stop, stamps=args.stamps, dumps=tuple(x for x in args.dumps.split(',') if x), mapping=args.mapping, dbgout=args.dbgout)
    s = g.build()
    open(args.o, 'w').write(s)
    json.dump({'clk': args.stamps == 'clk', 'stamps': g.stamp_names, 'dumps': g.dump_info, 'mapping': args.mapping}, open(args.o + '.json', 'w'))
    print('lines', s.count('\n'), 'bytes', len(s), 'vgpr hi', g.v.hi, 'nops added', g.a.nops_added)
```
